```python
import torch

def _softmax(x, axis=-1):
    return torch.softmax(x, dim=axis)

def _gelu(x):
    return torch.nn.functional.gelu(x, approximate='tanh')

def _silu(x):
    return torch.nn.functional.silu(x)

def _sigmoid(x):
    return torch.sigmoid(x)

def _layernorm(x, axis=-1, eps=1e-05):
    m = x.mean(dim=axis, keepdim=True)
    v = x.var(dim=axis, keepdim=True, unbiased=False)
    return (x - m) / torch.sqrt(v + eps)

def _scatter_add(tgt, idx, src, axis=0):
    return tgt.clone().index_add_(axis, idx, src)

def _segment_sum(src, seg, n):
    out = torch.zeros((n,) + src.shape[1:], dtype=src.dtype)
    return out.index_add_(0, seg, src)

def _pad(x, pw):
    flat = tuple((v for pair in reversed(pw) for v in pair))
    return torch.nn.functional.pad(x, flat)
kernel_name = 'adaLN_cond__gqa_block_cached__dense_activation_relu__decode'

def setup_inputs():

    _w = lambda a: (lambda t: t.to(torch.bfloat16) if t.is_floating_point() else t)(torch.as_tensor(a))

    def _A_setup():
        B, Sq, D = (1, 1, 576)
        Hq, Hkv, Sk, Dh = (32, 16, 65536, 128)
        assert Hq % Hkv == 0, (Hq, Hkv)
        return {'x': _w((lambda *s: torch.randn(*s, dtype=torch.bfloat16) * 0.1)(B, Sq, D)), 'k_cache': _w((lambda *s: torch.randn(*s, dtype=torch.bfloat16) * 0.8)(B, Hkv, Sk, Dh)), 'v_cache': _w((lambda *s: torch.randn(*s, dtype=torch.bfloat16) * 0.8)(B, Hkv, Sk, Dh)), 'wq': _w((lambda *s: torch.randn(*s, dtype=torch.bfloat16) * 0.8)(D, Hq * Dh) * D ** (-0.5)), 'wo': _w((lambda *s: torch.randn(*s, dtype=torch.bfloat16) * 0.8)(Hq * Dh, D) * (Hq * Dh) ** (-0.5))}
    _A_in = _A_setup()

    def _B_setup():
        B, S, D, Dff = (1, 1, 576, 4608)
        return {'x': _w((lambda *s: torch.randn(*s, dtype=torch.bfloat16) * 0.1)(B, S, D)), 'w1': _w((lambda *s: torch.randn(*s, dtype=torch.bfloat16) * 0.1)(D, Dff)), 'w2': _w((lambda *s: torch.randn(*s, dtype=torch.bfloat16) * 0.1)(Dff, D))}
    _B_in = _B_setup()
    return {'A_x': _A_in['x'], 'A_k_cache': _A_in['k_cache'], 'A_v_cache': _A_in['v_cache'], 'A_wq': _A_in['wq'], 'A_wo': _A_in['wo'], 'B_x': _B_in['x'], 'B_w1': _B_in['w1'], 'B_w2': _B_in['w2'], 'c': _w((lambda *s: torch.randn(*s, dtype=torch.bfloat16) * 0.4)(1, 576) * 8.0), 'w_mod': _w((lambda *s: torch.randn(*s, dtype=torch.bfloat16) * 0.4)(576, 6 * 576) * 576 ** (-0.5) * 8.0)}

def reference(A_x, A_k_cache, A_v_cache, A_wq, A_wo, B_x, B_w1, B_w2, c, w_mod):

    def _A_ref(x, k_cache, v_cache, wq, wo):
        B, Sq, D = x.shape
        Hq, Dh = (32, 128)
        Hkv = k_cache.shape[1]
        rep = Hq // Hkv
        q = (lambda x, *d: x.permute(*d))((x @ wq).reshape(B, Sq, Hq, Dh), 0, 2, 1, 3)
        k = (lambda x, n, axis: torch.repeat_interleave(x, n, dim=axis))(k_cache, rep, axis=1)
        v = (lambda x, n, axis: torch.repeat_interleave(x, n, dim=axis))(v_cache, rep, axis=1)
        scores = torch.einsum('bhqd,bhkd->bhqk', q, k) * Dh ** (-0.5)
        p = _softmax(scores, axis=-1)
        o = torch.einsum('bhqk,bhkd->bhqd', p, v)
        return (lambda x, *d: x.permute(*d))(o, 0, 2, 1, 3).reshape(B, Sq, Hq * Dh) @ wo

    def _B_ref(x, w1, w2):
        h = torch.einsum('bsd,df->bsf', x, w1)
        zero = torch.zeros_like(h)
        h = torch.maximum(h, zero)
        return torch.einsum('bsf,fd->bsd', h, w2)
    x = A_x
    mod = (_silu(c) @ w_mod).reshape(c.shape[0], 6, 1, -1)
    sa, ca, ga, sb, cb, gb = (mod[:, 0].clone(), mod[:, 1].clone(), mod[:, 2].clone(), mod[:, 3].clone(), mod[:, 4].clone(), mod[:, 5].clone())
    h = _layernorm(x, axis=-1) * (1 + ca) + sa
    x = x + ga * _A_ref(h, A_k_cache, A_v_cache, A_wq, A_wo)
    h = _layernorm(x, axis=-1) * (1 + cb) + sb
    x = x + gb * _B_ref(h, B_w1, B_w2)
    return x
```

```python
import re
TRANS=('v_exp_f32','v_log_f32','v_rcp_f32','v_rsq_f32','v_sqrt_f32','v_sin_f32','v_cos_f32','v_rcp_iflag_f32')
def regs_of(op):
    op=op.strip()
    op=re.sub(r'^-','',op); op=re.sub(r'^abs\((.*)\)$',r'\1',op); op=re.sub(r'^\|(.*)\|$',r'\1',op)
    m=re.fullmatch(r'([vsa])(\d+)',op)
    if m: return {(m.group(1),int(m.group(2)))}
    m=re.fullmatch(r'([vsa])\[(\d+):(\d+)\]',op)
    if m: return {(m.group(1),i) for i in range(int(m.group(2)),int(m.group(3))+1)}
    if op=='vcc': return {('s','vcc')}
    if op=='m0': return {('s','m0')}
    if op=='exec': return {('s','exec')}
    return set()
class I:
    def __init__(s,text):
        s.text=text; t=text.split(';')[0].strip()
        s.label=None; s.mn=None
        if not t or t.startswith('.'): s.kind='none'; return
        if t.endswith(':'): s.kind='label'; s.label=t[:-1]; return
        p=t.split(None,1); s.mn=p[0]; rest=p[1] if len(p)>1 else ''
        ops=[];d=0;cur=''
        for ch in rest:
            if ch in '[(': d+=1
            if ch in '])': d-=1
            if ch==',' and d==0: ops.append(cur.strip());cur=''
            else: cur+=ch
        if cur.strip(): ops.append(cur.strip())
        mods=''
        if ops:
            q=ops[-1].split(None,1)
            if len(q)>1: ops[-1]=q[0]; mods=q[1]
        s.ops=ops; s.mods=mods; mn=s.mn
        s.w=set(); s.r=set(); s.dpp=set(); s.states=1
        s.A=s.B=s.C=set()
        if mn=='s_nop': s.kind='salu'; s.states=int(ops[0],0)+1
        elif mn.startswith('v_mfma'):
            s.kind='mfma'; s.w=regs_of(ops[0]); s.A=regs_of(ops[1]); s.B=regs_of(ops[2]); s.C=regs_of(ops[3]); s.r=s.A|s.B|s.C
            assert '16x16x32' in mn, mn
        elif mn.startswith('v_'):
            s.kind='valu'
            if mn=='v_nop': return
            s.w=regs_of(ops[0]); src=ops[1:]
            if re.match(r'v_(add|sub|subrev|addc|subb)_co',mn): s.w|=regs_of(ops[1]); src=ops[2:]
            for o in src: s.r|=regs_of(o)
            if mn.startswith(('v_fmac','v_dot2c','v_writelane')) or '_dpp' in mn: s.r|=regs_of(ops[0])
            if mn.startswith('v_permlane'): s.w|=regs_of(ops[1]); s.r|=regs_of(ops[0])
            if '_dpp' in mn: s.dpp=regs_of(src[0])
            assert not mn.startswith('v_cmpx')
            assert 'sdwa' not in mn
        elif mn.startswith(('buffer_','global_')):
            s.kind='vmem'
            lds=' lds' in ' '+mods
            if mn.startswith('buffer_load') and not lds: s.w=regs_of(ops[0]); s.r=set().union(*[regs_of(o) for o in ops[1:]])
            elif mn.startswith('global_load') and 'lds' not in mn: s.w=regs_of(ops[0]); s.r=set().union(*[regs_of(o) for o in ops[1:]])
            else: s.r=set().union(*[regs_of(o) for o in ops])
            s.lds=lds or 'load_lds' in mn
            s.widedata=set()
            if re.match(r'buffer_store_dwordx[34]',mn): s.widedata=regs_of(ops[0])
            if re.match(r'global_store_dwordx[34]',mn): s.widedata=regs_of(ops[1])
        elif mn.startswith('ds_'):
            s.kind='ds'
            if mn.startswith(('ds_read','ds_bpermute','ds_swizzle','ds_permute')) or '_rtn' in mn: s.w=regs_of(ops[0]); s.r=set().union(*[regs_of(o) for o in ops[1:]])
            else: s.r=set().union(*[regs_of(o) for o in ops])
        elif mn.startswith('s_'):
            s.kind='salu'
            if mn.startswith(('s_cbranch','s_branch')): s.target=ops[0]
            elif ops and not mn.startswith(('s_cmp','s_waitcnt','s_barrier','s_sleep','s_setprio','s_endpgm','s_bitcmp')):
                s.w=regs_of(ops[0])
        else: raise ValueError(text)
def need(p,c):
    n=0
    V=lambda x:{r for r in x if r[0] in 'va'}
    S=lambda x:{r for r in x if r[0]=='s'}
    if p.kind=='valu':
        if c.kind=='valu':
            if V(p.w)&c.dpp: n=max(n,2)
            if c.mn.startswith('v_permlane') and V(p.w)&c.r: n=max(n,2)
            if c.mn.startswith(('v_readlane','v_readfirstlane')) and V(p.w)&c.r: n=max(n,1)
            if p.mn.startswith(TRANS) and V(p.w)&c.r: n=max(n,1)
            if S(p.w)&c.r: n=max(n,4 if c.mn.startswith(('v_readlane','v_writelane')) else 2)
            if 'op_sel' in p.mods and not p.mn.startswith('v_pk') and V(p.w)&(c.r|c.w): n=max(n,1)
        if c.kind=='mfma' and V(p.w)&c.r: n=max(n,2)
        if c.kind=='vmem' and S(p.w)&c.r: n=max(n,5)
        if c.kind in('vmem','ds') and p.mn.startswith(TRANS) and V(p.w)&c.r: n=max(n,1)
    if p.kind=='mfma':
        if c.kind=='mfma':
            if p.w&(c.A|c.B): n=max(n,8)
            if p.w&c.C and p.w!=c.C: n=max(n,6)
            if p.w&c.w and p.w!=c.C: n=max(n,6)
        if c.kind in('valu','vmem','ds') and p.w&(c.r|c.w): n=max(n,8)
        if c.kind=='valu' and p.C&c.w: n=max(n,3)
    if p.kind=='vmem' and p.widedata and c.kind in('valu','mfma','ds','vmem') and p.widedata&c.w: n=max(n,2)
    if p.kind=='salu' and ('s','m0') in p.w and c.kind=='vmem' and c.lds: n=max(n,1)
    return n
WIN=10
def missing(hist,c):
    d=0; miss=0
    for p in reversed(hist):
        miss=max(miss,need(p,c)-d)
        d+=p.states
        if d>=WIN: break
    return miss
def finalize(lines):
    ins=[]
    for l in lines:
        for t in l.split('\n'): ins.append(I(t))
    changed=True
    while changed:
        changed=False
        out=[]; hist=[]
        for x in ins:
            if x.kind in('none','label'): out.append(x); continue
            m=missing(hist,x)
            if m>0:
                n=I(f's_nop {m-1}'); out.append(n); hist.append(n)
            out.append(x); hist.append(x)
            if x.mn in('s_branch','s_endpgm'): hist=[]
            hist=hist[-WIN-2:]
        ins=out
        pos={x.label:i for i,x in enumerate(ins) if x.kind=='label'}
        for i,x in enumerate(ins):
            if x.kind=='salu' and x.mn.startswith(('s_cbranch','s_branch')):
                h=[y for y in ins[max(0,i-40):i+1] if y.kind not in('none','label')][-WIN-2:]
                worst=walk(ins,pos,pos[x.target],h,0)
                if worst>0:
                    ins.insert(i,I(f's_nop {worst-1}')); changed=True; break
    return '\n'.join(('' if x.kind in('label','none') else '    ')+x.text for x in ins)+'\n'
def walk(ins,pos,j,h,depth):
    worst=0; h=list(h); n0=len(h); d=0
    while j<len(ins) and d<WIN:
        y=ins[j]; j+=1
        if y.kind in('none','label'): continue
        dd=0
        for k in range(len(h)-1,-1,-1):
            if k<n0: worst=max(worst,need(h[k],y)-dd)
            dd+=h[k].states
            if dd>=WIN: break
        h.append(y); d+=y.states
        if y.mn=='s_endpgm': break
        if y.mn.startswith(('s_cbranch','s_branch')) and depth<3:
            hh=h[:]
            worst=max(worst,walk2(ins,pos,pos[y.target],hh,n0,d,depth+1))
            if y.mn=='s_branch': break
    return worst
def walk2(ins,pos,j,h,n0,d,depth):
    worst=0
    while j<len(ins) and d<WIN:
        y=ins[j]; j+=1
        if y.kind in('none','label'): continue
        dd=0
        for k in range(len(h)-1,-1,-1):
            if k<n0: worst=max(worst,need(h[k],y)-dd)
            dd+=h[k].states
            if dd>=WIN: break
        h.append(y); d+=y.states
        if y.mn=='s_endpgm': break
        if y.mn.startswith(('s_cbranch','s_branch')) and depth<3:
            worst=max(worst,walk2(ins,pos,pos[y.target],h[:],n0,d,depth+1))
            if y.mn=='s_branch': break
    return worst
```

```python
import sys, struct
from asmlib import finalize
KNAME='adaLN_cond__gqa_block_cached__dense_activation_relu__decode_kernel'
def f2u(x): return struct.unpack('<I',struct.pack('<f',x))[0]
LOG2E=f2u(1.4426950408889634); NLOG2E=f2u(-1.4426950408889634); SCALE=f2u(128**-0.5)
EPOCH=0; MODG=0x1000; CLR=0x10000
QREG=CLR; CNT=QREG+32768; X1=CNT+4096; PART=X1+4096; B1=PART+256*1536; C1=B1+64*2304; CLREND=C1+96*2304
NCLR=11; assert CLR+72*NCLR*1024>=CLREND
STAMP=0x180000; WSBYTES=0x200000
STRIP=[0,18432,36864]; VEC0=55296; VEC1=56448; QL=57600; PARTO=58624; PARTML=62720; OVEC=64768; LDSBYTES=65024
DPPM='row_mask:0xf bank_mask:0xf'
SPIN=200000

def gen(S=32, CH=2, NB=6, NS=2, THR=8, diag=False, kvf='nt', wf='', ffn_late=True, dyn=True):
    L=[]
    def A(s): L.append(s)
    uid=[0]
    def lab(p): uid[0]+=1; return f'L_{p}_{uid[0]}'
    def vr(b,n): return f'v[{b}:{b+n-1}]' if n>1 else f'v{b}'
    nst=[0]
    def stamp(k):
        if diag: A(f's_memrealtime s[{64+2*k}:{65+2*k}]\ns_waitcnt lgkmcnt(0)')
    def endwave():
        if diag: A('s_branch L_stampout')
        else: A('s_endpgm')
    def srd(d,lo,hi,n):
        A(f's_mov_b32 s{d}, {lo}\ns_mov_b32 s{d+1}, {hi}\ns_mov_b32 s{d+2}, {n}\ns_mov_b32 s{d+3}, 0x20000')
    def rb(d,s): A(f'v_cvt_pk_bf16_f32 v{d}, 0, v{s}')
    def xrow(op,v,t):
        for sw in ('v_permlane16_swap_b32','v_permlane32_swap_b32'):
            A(f'v_mov_b32 v{t}, v{v}\n{sw} v{v}, v{t}\n{op} v{v}, v{v}, v{t}')
    def wavesum(v,t):
        for d in ('quad_perm:[1,0,3,2]','quad_perm:[2,3,0,1]','row_half_mirror','row_mirror'):
            A(f'v_add_f32_dpp v{v}, v{v}, v{v} {d} {DPPM}')
        xrow('v_add_f32',v,t)
    WS='s[32:35]'; SA='s[36:39]'; SB='s[40:43]'; SC='s[44:47]'
    sTag=60; sSpin=61
    hdr=open('adaLN_cond__gqa_block_cached__dense_activation_relu__decode.s.ref').read().split('; Override launch')[0]
    A(hdr.rstrip())
    A(f'; @launch grid=(256,1,1) block=(512,1,1) lds={LDSBYTES}')
    A('.amdgcn_target "amdgcn-amd-amdhsa--gfx950"\n.text\n.globl %s\n.p2align 8\n.type %s,@function\n%s:'%(KNAME,KNAME,KNAME))
    A('s_cmp_ge_u32 s2, 256\ns_cbranch_scc1 L_end')
    A('s_load_dwordx16 s[4:19], s[0:1], 0\ns_load_dwordx8 s[20:27], s[0:1], 64\ns_load_dwordx2 s[28:29], s[0:1], 96')
    if diag:
        for k in range(8): A(f's_mov_b64 s[{64+2*k}:{65+2*k}], 0')
        A('s_memrealtime s[64:65]')
    A('v_lshrrev_b32 v1, 6, v0\nv_and_b32 v0, 63, v0\nv_readfirstlane_b32 s3, v1')
    A('v_lshrrev_b32 v1, 4, v0')
    A('s_cmp_ge_u32 s3, 4\ns_cbranch_scc1 L_helper')
    vK,vV=2,3; M=4; Q0=8; Q1=12; O=16; D0=20; D1=24; BB=28; s0,s1,p0,p1,mx,vm,vmn,ls,tt,al=44,45,46,47,48,49,50,51,52,53
    BUF=64
    assert BUF+32*NB<=256
    sOff,sRem,sStr,sLeft,sDec,sTick,sT=50,51,52,53,54,55,56
    A('s_lshr_b32 s48, s2, 4\ns_and_b32 s49, s2, 15')
    A(f'v_and_b32 v{vK}, 3, v0\nv_lshlrev_b32 v{vK}, 4, v{vK}\nv_bfe_u32 v4, v0, 2, 2\nv_lshl_add_u32 v{vK}, v4, 8, v{vK}\nv_lshl_add_u32 v{vK}, v1, 6, v{vK}')
    A(f'v_lshlrev_b32 v{vV}, 4, v0')
    A(f's_mul_i32 s{sOff}, s49, {S*4*4096}\ns_lshl_b32 s57, s3, 12\ns_add_u32 s{sOff}, s{sOff}, s57\ns_lshl_b32 s57, s48, 24')
    A('s_mov_b32 s38, 0x1000000\ns_mov_b32 s39, 0x20000\ns_mov_b32 s42, 0x1000000\ns_mov_b32 s43, 0x20000')
    A('s_waitcnt lgkmcnt(0)')
    A('s_add_u32 s36, s6, s57\ns_addc_u32 s37, s7, 0\ns_add_u32 s40, s8, s57\ns_addc_u32 s41, s9, 0')
    def ldK(b,thr=None):
        for j in range(4):
            if thr is not None: A(f's_waitcnt vmcnt({thr})')
            A(f'buffer_load_dwordx4 {vr(BUF+32*b+4*j,4)}, v{vK}, {SA}, s{sOff} offen offset:{1024*j} {kvf}')
    def ldV(b,thr=None):
        for j in range(4):
            if thr is not None: A(f's_waitcnt vmcnt({thr})')
            A(f'buffer_load_dwordx4 {vr(BUF+32*b+16+4*j,4)}, v{vV}, {SB}, s{sOff} offen offset:{1024*j} {kvf}')
    for b in range(NB):
        if b: A(f's_add_u32 s{sOff}, s{sOff}, {4*4096}')
        ldK(b, THR-1 if 8*b+4>THR else None); ldV(b, THR-1 if 8*b+8>THR else None)
        if b==0:
            srd(32,'s28','s29',WSBYTES)
            A(f's_mul_i32 s57, s48, 256\ns_add_u32 s57, s57, {CNT}\ns_add_u32 s58, s28, s57\ns_addc_u32 s59, s29, 0')
            A(f's_mov_b32 s{sRem}, {S-NB}\ns_mov_b32 s{sStr}, {4*4096}\ns_mov_b32 s{sLeft}, {NS}\ns_mov_b32 s{sDec}, 0\ns_mov_b32 s{sTick}, 0')
            A(f's_mov_b32 s62, {LOG2E}')
            A(f'v_and_b32 v{tt}, 1, v0\nv_lshlrev_b32 v{tt}, 4, v{tt}\nv_mov_b32 v{al}, 0xffff\nv_lshlrev_b32 v{tt}, v{tt}, v{al}\nv_bfe_u32 v{al}, v0, 1, 2')
            for w in range(4):
                A(f'v_cmp_eq_u32 vcc, {w}, v{al}\nv_cndmask_b32 v{M+w}, 0, v{tt}, vcc')
            for r in range(4): A(f'v_mov_b32 v{O+r}, 0')
            A(f'v_mov_b32 v{ls}, 0\nv_mov_b32 v{vm}, {f2u(-1e38)}\nv_mul_f32 v{vmn}, {NLOG2E}, v{vm}')
    stamp(1)
    A('s_barrier')
    A(f'ds_read_b128 {vr(Q1,4)}, v{vV} offset:{QL}')
    A(f'v_and_b32 v{tt}, 4, v0\nv_cmp_eq_u32 vcc, 0, v{tt}')
    A('s_waitcnt lgkmcnt(0)')
    for r in range(4): A(f'v_cndmask_b32 v{Q0+r}, 0, v{Q1+r}, vcc')
    for r in range(4): A(f'v_cndmask_b32 v{Q1+r}, v{Q1+r}, 0, vcc')
    stamp(2)
    ool=[]
    dyn0=S*64*4096; NCH=(4096-S*64)//CH
    def nxt():
        c=lab('nc'); rq=lab('rq'); n2=lab('n2')
        A(f's_cmp_lg_u32 s{sRem}, 0\ns_cbranch_scc1 {c}')
        if dyn:
            A(f's_waitcnt lgkmcnt(0)\ns_add_u32 s{sT}, s{sTick}, 1\ns_mul_i32 s{sOff}, s{sT}, {CH*4096}\ns_add_u32 s{sOff}, s{sOff}, {dyn0-4096}')
            A(f's_mov_b32 s{sStr}, 4096\ns_mov_b32 s{sRem}, {CH}\ns_cmp_lt_u32 s{sT}, {NCH}\ns_cbranch_scc1 {rq}')
        A(f's_mov_b32 s38, 0\ns_mov_b32 s42, 0\ns_mov_b32 s{sRem}, 0x7fffffff\ns_mov_b32 s{sDec}, 1\ns_mov_b32 s{sOff}, 0\ns_mov_b32 s{sStr}, 0')
        if dyn:
            A(f's_branch {c}\n{rq}:\ns_mov_b32 s{sTick}, 1\ns_atomic_add s{sTick}, s[58:59], 0 glc')
        A(f'{c}:\ns_add_u32 s{sOff}, s{sOff}, s{sStr}\ns_sub_u32 s{sRem}, s{sRem}, 1\ns_sub_u32 s{sLeft}, s{sLeft}, s{sDec}')
        if dyn:
            A(f's_cmp_lg_u32 s{sRem}, {CH}\ns_cbranch_scc1 {n2}\ns_mov_b32 s{sTick}, 1\ns_atomic_add s{sTick}, s[58:59], 0 glc\n{n2}:')
    def step(b,reissue,wK,wV):
        K=BUF+32*b; V=K+16
        if wK is not None: A(f's_waitcnt vmcnt({wK})')
        mf='v_mfma_f32_16x16x32_bf16'
        A(f'{mf} {vr(D0,4)}, {vr(K,4)}, {vr(Q0,4)}, 0')
        A(f'{mf} {vr(D1,4)}, {vr(K+8,4)}, {vr(Q0,4)}, 0')
        A(f'{mf} {vr(D0,4)}, {vr(K+4,4)}, {vr(Q1,4)}, {vr(D0,4)}')
        A(f'{mf} {vr(D1,4)}, {vr(K+12,4)}, {vr(Q1,4)}, {vr(D1,4)}')
        if reissue: nxt(); ldK(b)
        A(f'v_mov_b32_dpp v{s0}, v{D0} quad_perm:[0,0,0,0] {DPPM}\nv_mov_b32_dpp v{s1}, v{D1} quad_perm:[0,0,0,0] {DPPM}')
        for c in (1,2,3):
            A(f'v_add_f32_dpp v{s0}, v{D0+c}, v{s0} quad_perm:[{c},{c},{c},{c}] {DPPM}\nv_add_f32_dpp v{s1}, v{D1+c}, v{s1} quad_perm:[{c},{c},{c},{c}] {DPPM}')
        rb(s0,s0); rb(s1,s1)
        A(f'v_mul_f32 v{s0}, {SCALE}, v{s0}\nv_mul_f32 v{s1}, {SCALE}, v{s1}')
        rb(s0,s0); rb(s1,s1)
        rs=lab('rs'); ct=lab('ct')
        A(f'v_max_f32 v{mx}, v{s0}, v{s1}\nv_cmp_gt_f32 vcc, v{mx}, v{vm}\ns_cbranch_vccnz {rs}\n{ct}:')
        ool.append((rs,ct))
        A(f'v_fma_f32 v{s0}, v{s0}, s62, v{vmn}\nv_fma_f32 v{s1}, v{s1}, s62, v{vmn}\nv_exp_f32 v{s0}, v{s0}\nv_exp_f32 v{s1}, v{s1}')
        A(f'v_cvt_pk_bf16_f32 v{p0}, v{s0}, v{s0}\nv_cvt_pk_bf16_f32 v{p1}, v{s1}, v{s1}')
        A(f'v_add_f32 v{ls}, v{ls}, v{s0}\nv_add_f32 v{ls}, v{ls}, v{s1}')
        for t in range(4):
            p=p0 if t<2 else p1
            for w in range(4):
                own=(w>>1)==(t&1)
                if own: A(f'v_and_b32 v{BB+4*t+w}, v{p}, v{M+w}')
                else: A(f'v_and_b32_dpp v{BB+4*t+w}, v{p}, v{M+w} row_half_mirror {DPPM}')
        if wV is not None: A(f's_waitcnt vmcnt({wV})')
        for t in range(4):
            A(f'{mf} {vr(O,4)}, {vr(V+4*t,4)}, {vr(BB+4*t,4)}, {vr(O,4)}')
        if reissue: ldV(b)
    for b in range(NB):
        re=b<NS
        yK=8*(NB-b)-4+8*min(b,NS); yV=8*(NB-b)-8+8*min(b,NS)+(4 if re else 0)
        step(b,re,min(yK,63) if 8*(NB-b)-4<THR else None, min(yV,63) if 8*(NB-b)-8<THR else None)
    stamp(3)
    A('L_sloop:')
    for b in range(NS):
        step(b,True,8*NS-4,8*NS-4)
        A(f's_cmp_eq_u32 s{sLeft}, 0')
        A('s_cbranch_scc1 L_sdone' if b<NS-1 else 's_cbranch_scc0 L_sloop')
    A('L_sdone:')
    stamp(4)
    A(f's_lshl_b32 s57, s3, 10\nv_add_u32 v{tt}, s57, v{vV}\nv_lshrrev_b32 v{al}, 1, v{tt}')
    A(f'v_mul_f32 v{vmn}, -1.0, v{vmn}')
    A(f'ds_write_b128 v{tt}, {vr(O,4)} offset:{PARTO}\nds_write_b64 v{al}, {vr(vmn,2)} offset:{PARTML}')
    A('s_waitcnt lgkmcnt(0)\ns_barrier')
    A('s_cmp_lg_u32 s3, 0\ns_cbranch_scc1 L_wend')
    R=BUF+32*NS; ML=R+16
    for w in range(4): A(f'ds_read_b64 {vr(ML+2*w,2)}, v{al} offset:{PARTML+512*w}')
    for w in range(4): A(f'ds_read_b128 {vr(R+4*w,4)}, v{vV} offset:{PARTO+1024*w}')
    A(f'v_bfe_u32 v{s0}, v0, 3, 1\nv_lshrrev_b32 v{s1}, 5, v0\nv_lshl_add_u32 v{s0}, v{s0}, 1, v{s1}\nv_mul_u32_u24 v{s0}, 384, v{s0}')
    A(f'v_and_b32 v{s1}, 1, v1\nv_lshl_add_u32 v{p0}, v{s1}, 7, v{s0}\nv_and_b32 v{s1}, 7, v0\nv_lshl_add_u32 v{p0}, v{s1}, 4, v{p0}')
    A(f's_mul_i32 s57, s2, 1536\ns_add_u32 s57, s57, {PART}')
    A('s_waitcnt lgkmcnt(4)')
    A(f'v_max3_f32 v{vmn}, v{ML}, v{ML+2}, v{ML+4}\nv_max_f32 v{vmn}, v{vmn}, v{ML+6}')
    for w in range(4): A(f'v_sub_f32 v{ML+2*w}, v{ML+2*w}, v{vmn}')
    for w in range(4): A(f'v_exp_f32 v{ML+2*w}, v{ML+2*w}')
    A('s_waitcnt lgkmcnt(0)')
    for r in range(4): A(f'v_mul_f32 v{O+r}, v{R+r}, v{ML}')
    for w in range(1,4):
        for r in range(4): A(f'v_fmac_f32 v{O+r}, v{R+4*w+r}, v{ML+2*w}')
    for r in range(4): A(f'v_min_u32 v{O+r}, -2, v{O+r}')
    A(f'buffer_store_dwordx4 {vr(O,4)}, v{p0}, {WS}, s57 offen sc1')
    A(f'v_mul_f32 v{ls}, v{ML}, v{ML+1}')
    for w in range(1,4): A(f'v_fmac_f32 v{ls}, v{ML+2*w}, v{ML+2*w+1}')
    A(f'v_add_f32_dpp v{ls}, v{ls}, v{ls} row_half_mirror {DPPM}')
    xrow('v_add_f32',ls,tt)
    A(f'v_min_u32 v{vmn}, -2, v{vmn}\nv_min_u32 v{ls}, -2, v{ls}')
    A('s_mov_b32 exec_lo, 0x00000101\ns_mov_b32 exec_hi, 0x00000101')
    A(f'buffer_store_dwordx2 {vr(vmn,2)}, v{s0}, {WS}, s57 offen offset:256 sc1')
    A('s_mov_b64 exec, -1')
    stamp(5)
    A('L_wend:')
    endwave()
    for rs,ct in ool:
        A(f'{rs}:\nv_max_f32 v{mx}, v{mx}, v{vm}')
        A(f'v_max_f32_dpp v{vm}, v{mx}, v{mx} row_half_mirror {DPPM}')
        xrow('v_max_f32',vm,tt)
        A(f'v_mul_f32 v{tt}, {NLOG2E}, v{vm}\nv_sub_f32 v{al}, v{tt}, v{vmn}\nv_exp_f32 v{al}, v{al}\nv_mov_b32 v{vmn}, v{tt}')
        A(f'v_mul_f32 v{ls}, v{ls}, v{al}')
        for r in range(4): A(f'v_mul_f32 v{O+r}, v{O+r}, v{al}')
        A(f's_branch {ct}')
    X=8; G=20; T0=40; W=64; F=136; DD=208
    va,vb,vc=2,3,4
    def load9(srdn):
        A(f'v_lshlrev_b32 v{va}, 1, v0')
        for i in range(9): A(f'v_mov_b32 v{X+i}, 0')
        for i in range(9): A(f'buffer_load_short_d16_hi v{X+i}, v{va}, {srdn}, 0 offen offset:{128*i}')
    def dma18(srdn,voff,soff,rowbytes,ldsbase):
        A(f's_mov_b32 m0, {ldsbase}')
        for t in range(18):
            if t: A(f's_add_u32 m0, m0, 1024\ns_add_u32 s{soff}, s{soff}, {32*rowbytes}')
            A(f'buffer_load_dwordx4 v{voff}, {srdn}, s{soff} offen {wf} lds')
    def trread(ldsbase):
        A(f'v_and_b32 v{vb}, 15, v0\nv_lshlrev_b32 v{vb}, 3, v{vb}\nv_lshl_add_u32 v{vb}, v1, 8, v{vb}\nv_add_u32 v{vb}, {ldsbase}, v{vb}')
        for t in range(18):
            A(f'ds_read_b64_tr_b16 {vr(W+4*t,2)}, v{vb} offset:{1024*t}\nds_read_b64_tr_b16 {vr(W+4*t+2,2)}, v{vb} offset:{1024*t+128}')
    def write9(src,base):
        A(f'v_lshlrev_b32 v{va}, 1, v0')
        for i in range(9): A(f'ds_write_b16_d16_hi v{va}, v{src+i} offset:{base+128*i}')
    def gemv18(base,w_is_a):
        A(f'v_lshlrev_b32 v{vb}, 4, v1')
        for t in range(18): A(f'ds_read_b128 {vr(F+4*t,4)}, v{vb} offset:{base+64*t}')
        for t in range(18):
            if 17-t<=15: A(f's_waitcnt lgkmcnt({17-t})')
            elif t==0: A('s_waitcnt lgkmcnt(15)')
            a,b=(vr(W+4*t,4),vr(F+4*t,4)) if w_is_a else (vr(F+4*t,4),vr(W+4*t,4))
            A(f'v_mfma_f32_16x16x32_bf16 {vr(DD,4)}, {a}, {b}, {vr(DD,4) if t else 0}')
    def spin_tail(loop,cond_branch):
        done=lab('pd')
        A(f's_add_u32 s{sSpin}, s{sSpin}, 1\ns_cmp_gt_u32 s{sSpin}, {SPIN}\ns_cbranch_scc1 {done}\n{cond_branch} {loop}\n{done}:')
    def gather_mod9(cls):
        A(f'v_lshrrev_b32 v{vc}, 3, v0\nv_lshlrev_b32 v{vc}, 7, v{vc}\nv_and_b32 v{T0}, 7, v0\nv_lshl_add_u32 v{vc}, v{T0}, 3, v{vc}')
        base=MODG+cls*72*128
        A(f's_mov_b32 s48, {base}\ns_mov_b32 s49, {base+4096}\ns_mov_b32 s50, {base+8192}\ns_mov_b32 s{sSpin}, 0')
        lp=lab('gm'); A(f'{lp}:')
        for i in range(9): A(f'buffer_load_dwordx2 {vr(G+2*i,2)}, v{vc}, {WS}, s{48+i//4} offen offset:{(i%4)*1024} sc1')
        A('s_waitcnt vmcnt(0)')
        for op,d in (('min',T0),('max',T0+1)):
            A(f'v_{op}3_u32 v{d}, v{G+1}, v{G+3}, v{G+5}')
            for i in (3,5,7): A(f'v_{op}3_u32 v{d}, v{d}, v{G+2*i+1}, v{G+2*i+3}')
        A(f'v_cmp_ne_u32 s[52:53], s{sTag}, v{T0}\nv_cmp_ne_u32 vcc, s{sTag}, v{T0+1}\ns_or_b64 vcc, vcc, s[52:53]')
        spin_tail(lp,'s_cbranch_vccnz')
        for i in range(9): A(f'v_and_b32 v{G+2*i+1}, 0xffff0000, v{G+2*i}\nv_lshlrev_b32 v{G+2*i}, 16, v{G+2*i}')
    def layernorm():
        s,t,mean=T0,T0+1,T0+2; Dv=T0+4
        A(f'v_add_f32 v{s}, v{X}, v{X+1}')
        for i in range(2,9): A(f'v_add_f32 v{s}, v{s}, v{X+i}')
        wavesum(s,t)
        A(f'v_mul_f32 v{mean}, {f2u(1/576)}, v{s}')
        for i in range(9): A(f'v_sub_f32 v{Dv+i}, v{X+i}, v{mean}')
        A(f'v_mul_f32 v{s}, v{Dv}, v{Dv}')
        for i in range(1,9): A(f'v_fmac_f32 v{s}, v{Dv+i}, v{Dv+i}')
        rb(mean,mean)
        for i in range(9): A(f'v_sub_f32 v{X+i}, v{X+i}, v{mean}')
        wavesum(s,t)
        for i in range(9): rb(X+i,X+i)
        A(f'v_mul_f32 v{s}, {f2u(1/576)}, v{s}'); rb(s,s)
        A(f'v_add_f32 v{s}, {f2u(1e-5)}, v{s}'); rb(s,s)
        A(f'v_sqrt_f32 v{s}, v{s}'); rb(s,s)
        A(f'v_rcp_f32 v{s}, v{s}')
        for i in range(9): A(f'v_mul_f32 v{X+i}, v{X+i}, v{s}')
        for i in range(9): rb(X+i,X+i)
    def modulate():
        for i in range(9): A(f'v_mul_f32 v{X+i}, v{X+i}, v{G+2*i+1}')
        for i in range(9): rb(X+i,X+i)
        for i in range(9): A(f'v_add_f32 v{X+i}, v{X+i}, v{G+2*i}')
        for i in range(9): rb(X+i,X+i)
    A('L_helper:\ns_setprio 3\ns_sub_u32 s3, s3, 4')
    A('s_waitcnt lgkmcnt(0)')
    A(f's_load_dword s{sTag}, s[28:29], {EPOCH}')
    srd(32,'s28','s29',WSBYTES)
    A('s_cmp_eq_u32 s3, 1\ns_cbranch_scc1 L_h1\ns_cmp_eq_u32 s3, 2\ns_cbranch_scc1 L_h2\ns_cmp_eq_u32 s3, 3\ns_cbranch_scc1 L_hb1')
    def mktag(): A(f's_waitcnt lgkmcnt(0)\ns_mul_i32 s{sTag}, s{sTag}, 1664525\ns_add_u32 s{sTag}, s{sTag}, 1013904223')
    A('s_lshr_b32 s48, s2, 6\ns_lshl_b32 s48, s48, 3\ns_and_b32 s49, s2, 7\ns_or_b32 s48, s48, s49\ns_cmp_ge_u32 s48, 27\ns_cbranch_scc1 L_hb1')
    srd(36,'s20','s21',1152); srd(40,'s22','s23',576*6912)
    load9(SA)
    A('s_mov_b32 s50, 0\ns_mov_b32 s51, 0\ns_mov_b32 s52, 1152')
    A('s_cmp_lt_u32 s48, 9\ns_cbranch_scc1 L_cls\ns_mov_b32 s50, 1\ns_mov_b32 s51, 2304\ns_mov_b32 s52, 3456\ns_sub_u32 s48, s48, 9')
    A('s_cmp_lt_u32 s48, 9\ns_cbranch_scc1 L_cls\ns_mov_b32 s50, 2\ns_mov_b32 s51, 3456\ns_mov_b32 s52, 1152\ns_sub_u32 s48, s48, 9\nL_cls:')
    A('s_bfe_u32 s49, s2, 0x30003\ns_lshl_b32 s48, s48, 3\ns_add_u32 s48, s48, s49')
    A('s_lshl_b32 s49, s48, 4\ns_add_u32 s51, s51, s49')
    A(f'v_lshrrev_b32 v{vc}, 1, v0\nv_mul_u32_u24 v{vc}, 6912, v{vc}\nv_and_b32 v{T0}, 1, v0\nv_mul_u32_u24 v{T0}, s52, v{T0}\nv_add_u32 v{vc}, v{vc}, v{T0}')
    dma18(SB,vc,51,6912,STRIP[0])
    A('s_cmp_lg_u32 s50, 0\ns_cbranch_scc1 L_noclr')
    A(f'v_lshlrev_b32 v{vb}, 4, v0')
    for r in range(4): A(f'v_mov_b32 v{DD+r}, -1')
    A(f's_mul_i32 s49, s48, {NCLR*1024}\ns_add_u32 s49, s49, {CLR}')
    for t in range(NCLR):
        if t and t%4==0: A('s_add_u32 s49, s49, 4096')
        A(f'buffer_store_dwordx4 {vr(DD,4)}, v{vb}, {WS}, s49 offen offset:{(t%4)*1024} sc1')
    A(f's_waitcnt vmcnt({18+NCLR})\ns_branch L_silu\nL_noclr:\ns_waitcnt vmcnt(18)\nL_silu:')
    for i in range(9): A(f'v_mul_f32 v{G+i}, {NLOG2E}, v{X+i}')
    for i in range(9): A(f'v_exp_f32 v{G+i}, v{G+i}')
    for i in range(9): A(f'v_add_f32 v{G+i}, 1.0, v{G+i}')
    for i in range(9): A(f'v_rcp_f32 v{F+i}, v{G+i}')
    for i in range(9): A(f'v_mul_f32 v{F+10+i}, v{X+i}, v{F+i}')
    for i in range(9): A(f'v_fma_f32 v{F+20+i}, -v{F+10+i}, v{G+i}, v{X+i}')
    for i in range(9): A(f'v_fma_f32 v{F+10+i}, v{F+20+i}, v{F+i}, v{F+10+i}')
    for i in range(9): A(f'v_div_fixup_f32 v{X+i}, v{F+10+i}, v{G+i}, v{X+i}')
    for i in range(9): rb(X+i,X+i)
    mktag()
    write9(X,VEC0)
    A(f's_cmp_lg_u32 s50, 0\ns_cbranch_scc1 L_w0\ns_waitcnt vmcnt({NCLR})\ns_branch L_w1\nL_w0:\ns_waitcnt vmcnt(0)\nL_w1:')
    stamp(1)
    trread(STRIP[0])
    gemv18(VEC0,False)
    A(f's_mul_i32 s49, s50, {72*128}\ns_lshl_b32 s51, s48, 7\ns_add_u32 s49, s49, s51\ns_add_u32 s49, s49, {MODG}')
    A('s_cmp_eq_u32 s50, 1\ns_cselect_b32 s51, 0, 1.0')
    A(f'v_lshlrev_b32 v{vb}, 3, v0\nv_mov_b32 v{T0+3}, s{sTag}')
    rb(T0,DD)
    A(f'v_mov_b32_dpp v{T0+1}, v{T0} row_ror:8 {DPPM}\nv_add_f32 v{T0+1}, s51, v{T0+1}\nv_cvt_pk_bf16_f32 v{T0+2}, v{T0}, v{T0+1}')
    A('s_waitcnt vmcnt(0)\ns_mov_b64 exec, 0xff')
    A(f'buffer_store_dwordx2 {vr(T0+2,2)}, v{vb}, {WS}, s49 offen sc1\ns_mov_b64 exec, -1')
    stamp(2)
    A('s_branch L_hb1')
    A('L_h1:')
    srd(36,'s4','s5',1152); srd(40,'s10','s11',576*8192)
    load9(SA)
    A('s_lshr_b32 s54, s2, 5\ns_lshl_b32 s54, s54, 3\ns_and_b32 s49, s2, 7\ns_or_b32 s54, s54, s49\ns_lshl_b32 s54, s54, 2\ns_bfe_u32 s49, s2, 0x20003\ns_or_b32 s54, s54, s49')
    A('s_lshl_b32 s51, s54, 5')
    A(f'v_lshrrev_b32 v{vc}, 1, v0\nv_lshlrev_b32 v{vc}, 13, v{vc}\nv_and_b32 v{T0}, 1, v0\nv_lshl_add_u32 v{vc}, v{T0}, 4, v{vc}')
    dma18(SB,vc,51,8192,STRIP[1])
    A('s_waitcnt vmcnt(18)')
    layernorm()
    mktag()
    A('s_waitcnt vmcnt(0)')
    stamp(1)
    trread(STRIP[1])
    gather_mod9(0)
    stamp(2)
    modulate()
    write9(X,VEC1)
    gemv18(VEC1,True)
    A(f's_lshl_b32 s49, s54, 7\ns_add_u32 s49, s49, {QREG}\nv_lshlrev_b32 v{vb}, 3, v1')
    A(f'v_cvt_pk_bf16_f32 v{T0}, v{DD}, v{DD+1}\nv_cvt_pk_bf16_f32 v{T0+1}, v{DD+2}, v{DD+3}\nv_min_u32 v{T0}, -2, v{T0}\nv_min_u32 v{T0+1}, -2, v{T0+1}')
    A('s_mov_b32 exec_lo, 0x00010001\ns_mov_b32 exec_hi, 0x00010001')
    A(f'buffer_store_dwordx2 {vr(T0,2)}, v{vb}, {WS}, s49 offen sc1\ns_mov_b64 exec, -1')
    stamp(3)
    A(f'v_bfe_u32 v{va}, v0, 3, 1\nv_lshlrev_b32 v{va}, 4, v{va}\nv_lshl_add_u32 v{va}, v1, 2, v{va}\nv_and_b32 v{T0+2}, 3, v0\nv_add_u32 v{va}, v{va}, v{T0+2}')
    A(f'v_lshrrev_b32 v{vc}, 1, v{va}\nv_lshlrev_b32 v{vc}, 7, v{vc}\nv_and_b32 v{va}, 1, v{va}\nv_lshl_add_u32 v{vc}, v{va}, 4, v{vc}')
    A(f's_lshr_b32 s49, s2, 4\ns_lshl_b32 s49, s49, 11\ns_add_u32 s49, s49, {QREG}\ns_mov_b32 s{sSpin}, 0')
    A(f'L_qp:\nbuffer_load_dwordx4 {vr(F,4)}, v{vc}, {WS}, s49 offen sc1\ns_waitcnt vmcnt(0)')
    A(f'v_max3_u32 v{T0}, v{F}, v{F+1}, v{F+2}\nv_max_u32 v{T0}, v{T0}, v{F+3}\nv_cmp_eq_u32 vcc, -1, v{T0}')
    spin_tail('L_qp','s_cbranch_vccnz')
    A(f'v_lshlrev_b32 v{vb}, 4, v0\nds_write_b128 v{vb}, {vr(F,4)} offset:{QL}\ns_waitcnt lgkmcnt(0)')
    stamp(4)
    A('L_h2:\nL_hb1:\ns_barrier')
    A('s_cmp_lt_u32 s2, 96\ns_cbranch_scc1 L_ffn\ns_cmp_lt_u32 s2, 160\ns_cbranch_scc1 L_wo\ns_cmp_ge_u32 s2, 178\ns_cbranch_scc1 L_wend')
    A('s_cmp_lg_u32 s3, 3\ns_cbranch_scc1 L_wend')
    mktag()
    A('s_sub_u32 s54, s2, 160')
    srd(36,'s4','s5',1152); srd(40,'s24','s25',1152)
    vcol,vx,vga,vgb,vo=5,6,10,11,12
    A(f'v_and_b32 v{T0}, 7, v0\nv_lshl_add_u32 v{vcol}, v1, 3, v{T0}')
    A(f's_lshl_b32 s55, s54, 6\nv_lshlrev_b32 v{va}, 1, v{vcol}\nv_mov_b32 v{vx}, 0')
    A(f'buffer_load_short_d16_hi v{vx}, v{va}, {SA}, s55 offen')
    A(f'v_lshlrev_b32 v{vc}, 7, v1\nv_lshl_add_u32 v{vc}, v{T0}, 3, v{vc}')
    A(f's_lshl_b32 s48, s54, 9\ns_add_u32 s48, s48, {MODG+72*128}\ns_mov_b32 s{sSpin}, 0')
    A(f'L_rg:\nbuffer_load_dwordx2 {vr(vga,2)}, v{vc}, {WS}, s48 offen sc1\ns_waitcnt vmcnt(0)\nv_cmp_ne_u32 vcc, s{sTag}, v{vgb}')
    spin_tail('L_rg','s_cbranch_vccnz')
    A(f'v_and_b32 v{vgb}, 0xffff0000, v{vga}\nv_lshlrev_b32 v{vga}, 16, v{vga}')
    A(f'v_lshrrev_b32 v{vo}, 3, v0\nv_mul_u32_u24 v{vo}, 2304, v{vo}\nv_lshl_add_u32 v{vo}, v{T0}, 4, v{vo}')
    for t in range(1,12): A(f'v_add_u32 v{vo+t}, {t*8*2304}, v{vo}')
    A(f's_lshl_b32 s48, s54, 7\ns_add_u32 s49, s48, {C1}\ns_add_u32 s50, s48, {X1}\ns_add_u32 s48, s48, {B1}')
    A(f'v_lshlrev_b32 v{vb}, 2, v{vcol}')
    A('s_barrier')
    stamp(1)
    def reduce_gather(n,soff,gate):
        lp=lab('rp'); A(f's_mov_b32 s{sSpin}, 0\n{lp}:')
        for t in range(n): A(f'buffer_load_dwordx4 {vr(W+4*t,4)}, v{vo+t}, {WS}, s{soff} offen sc1')
        A('s_waitcnt vmcnt(0)')
        A(f'v_max_u32 v{T0}, v{W}, v{W+1}')
        for k in range(1,2*n): A(f'v_max3_u32 v{T0}, v{T0}, v{W+2*k}, v{W+2*k+1}')
        A(f'v_cmp_eq_u32 vcc, -1, v{T0}')
        spin_tail(lp,'s_cbranch_vccnz')
        for t in range(1,n):
            for r in range(4): A(f'v_add_f32 v{W+r}, v{W+r}, v{W+4*t+r}')
        A(f'v_permlane32_swap_b32 v{W}, v{W+2}\nv_permlane32_swap_b32 v{W+1}, v{W+3}\nv_add_f32 v{W}, v{W}, v{W+2}\nv_add_f32 v{W+1}, v{W+1}, v{W+3}')
        A(f'v_permlane16_swap_b32 v{W}, v{W+1}\nv_add_f32 v{W}, v{W}, v{W+1}\nv_add_f32_dpp v{W}, v{W}, v{W} row_ror:8 {DPPM}')
        rb(W,W); A(f'v_mul_f32 v{W}, v{W}, v{gate}'); rb(W,W); A(f'v_add_f32 v{vx}, v{vx}, v{W}'); rb(vx,vx)
    reduce_gather(8,48,vga)
    A('s_mov_b32 exec_lo, 0x00ff00ff\ns_mov_b32 exec_hi, 0x00ff00ff')
    A(f'buffer_store_dword v{vx}, v{vb}, {WS}, s50 offen sc1\ns_mov_b64 exec, -1')
    stamp(2)
    reduce_gather(12,49,vgb)
    A('s_mov_b32 exec_lo, 0x00ff00ff\ns_mov_b32 exec_hi, 0x00ff00ff')
    A(f'buffer_store_short_d16_hi v{vx}, v{va}, {SB}, s55 offen')
    A(f's_cmp_lg_u32 s54, 0\ns_cbranch_scc1 L_rend\ns_mov_b64 exec, 1\nv_mov_b32 v{T0}, s{sTag}\nv_mov_b32 v{vb}, {EPOCH}\nbuffer_store_dword v{T0}, v{vb}, {WS}, 0 offen sc1\nL_rend:\ns_mov_b64 exec, -1')
    stamp(3)
    endwave()
    SEL=8; P=12; BT=24; vso=5
    def slab_consts():
        A(f'v_bfe_u32 v{T0}, v0, 3, 1\nv_mul_u32_u24 v{T0}, 0x0202, v{T0}\nv_add_u32 v{T0}, 0x0100, v{T0}')
        A(f'v_or_b32 v{T0+1}, 0x0c0c0000, v{T0}\nv_lshlrev_b32 v{T0}, 16, v{T0}\nv_or_b32 v{T0}, 0x0c0c, v{T0}')
        A(f'v_and_b32 v{T0+2}, 1, v0\nv_cmp_eq_u32 vcc, 1, v{T0+2}\nv_cndmask_b32 v{T0}, v{T0+1}, v{T0}, vcc')
        A(f'v_bfe_u32 v{T0+2}, v0, 1, 2\nv_mov_b32 v{T0+1}, 0x0c0c0c0c')
        for w in range(4): A(f'v_cmp_eq_u32 vcc, {w}, v{T0+2}\nv_cndmask_b32 v{SEL+w}, v{T0+1}, v{T0}, vcc')
        A(f'v_and_b32 v{vso}, 1, v1\nv_lshlrev_b32 v{vso}, 7, v{vso}\nv_and_b32 v{T0}, 7, v0\nv_lshl_add_u32 v{vso}, v{T0}, 4, v{vso}\nv_lshrrev_b32 v{T0}, 5, v0\nv_lshl_add_u32 v{vso}, v{T0}, 3, v{vso}')
        A(f'v_lshlrev_b32 v{va}, 5, v1')
    def slab_stage(nu,WB,soff):
        A(f'ds_read_b128 {vr(P,4)}, v{va} offset:{OVEC}')
        if nu==8: A(f'ds_read_b128 {vr(P+4,4)}, v{va} offset:{OVEC+16}')
        else: A(f'ds_read_b64 {vr(P+4,2)}, v{va} offset:{OVEC+16}')
        A('s_waitcnt lgkmcnt(1)')
        def mkb(u):
            if u==4: A('s_waitcnt lgkmcnt(0)')
            for w in range(4): A(f'v_perm_b32 v{BT+4*(u&1)+w}, v{P+u}, v{P+u}, v{SEL+w}')
        mkb(0)
        for u in range(nu):
            if u+1<nu: mkb(u+1)
            for c in range(3):
                A(f'v_mfma_f32_16x16x32_bf16 {vr(DD+4*c,4)}, {vr(WB+12*u+4*c,4)}, {vr(BT+4*(u&1),4)}, {vr(DD+4*c,4) if u else 0}')
        for c in range(3):
            d=DD+4*c
            A(f'v_permlane32_swap_b32 v{d}, v{d+2}\nv_permlane32_swap_b32 v{d+1}, v{d+3}')
        for c in range(3):
            d=DD+4*c
            A(f'v_add_f32_dpp v{d}, v{d+2}, v{d} row_ror:8 {DPPM}\nv_add_f32_dpp v{d+1}, v{d+3}, v{d+1} row_ror:8 {DPPM}')
        for c in range(3):
            d=DD+4*c
            A(f'v_min_u32 v{d}, -2, v{d}\nv_min_u32 v{d+1}, -2, v{d+1}')
        A('s_mov_b32 exec_lo, 0x00ff00ff\ns_mov_b32 exec_hi, 0x00ff00ff')
        for c in range(3): A(f'buffer_store_dwordx2 {vr(DD+4*c,2)}, v{vso}, {WS}, s{soff} offen offset:{256*c} sc1')
        A('s_mov_b64 exec, -1')
    A('L_wo:\ns_sub_u32 s54, s2, 96\ns_cmp_eq_u32 s3, 3\ns_cbranch_scc1 L_wog')
    srd(36,'s12','s13',4096*1152)
    A(f'v_lshrrev_b32 v{vc}, 1, v1\nv_lshlrev_b32 v{vc}, 5, v{vc}\nv_bfe_u32 v{T0}, v0, 3, 1\nv_lshl_add_u32 v{vc}, v{T0}, 3, v{vc}\nv_and_b32 v{T0}, 1, v1\nv_lshl_add_u32 v{vc}, v{T0}, 2, v{vc}')
    A(f'v_mul_u32_u24 v{vc}, 1152, v{vc}\nv_and_b32 v{T0}, 7, v0\nv_lshl_add_u32 v{vc}, v{T0}, 4, v{vc}')
    A(f's_mul_i32 s48, s54, {64*1152}\ns_mul_i32 s49, s3, 384\ns_add_u32 s48, s48, s49')
    for u in range(8):
        A(f's_add_u32 s49, s48, {(16*(u&1)+(u>>1))*1152}')
        for c in range(3): A(f'buffer_load_dwordx4 {vr(W+12*u+4*c,4)}, v{vc}, {SA}, s49 offen offset:{128*c} nt')
    slab_consts()
    A(f's_mul_i32 s48, s54, 2304\ns_mul_i32 s49, s3, 768\ns_add_u32 s48, s48, s49\ns_add_u32 s48, s48, {B1}')
    A('s_waitcnt vmcnt(0)\ns_barrier\ns_barrier')
    stamp(5)
    slab_stage(8,W,48)
    stamp(6)
    endwave()
    A('L_wog:')
    A(f'v_mul_u32_u24 v{vb}, 1536, v1\nv_and_b32 v{T0}, 15, v0\nv_lshl_add_u32 v{vc}, v{T0}, 4, v{vb}')
    A(f'v_lshlrev_b32 v{va}, 3, v{T0}\nv_lshl_add_u32 v{va}, v1, 1, v{va}')
    A(f's_lshr_b32 s48, s54, 2\ns_mul_i32 s48, s48, {16*1536}\ns_and_b32 s49, s54, 3\ns_mul_i32 s49, s49, 384\ns_add_u32 s48, s48, s49\ns_add_u32 s48, s48, {PART}')
    A('s_add_u32 s49, s48, 6144\ns_add_u32 s50, s49, 6144\ns_add_u32 s51, s50, 6144')
    A(f's_mov_b32 s{sSpin}, 0\ns_barrier')
    stamp(1)
    ML2=W+16
    A('L_ap:')
    for t in range(4): A(f'buffer_load_dwordx4 {vr(W+4*t,4)}, v{vc}, {WS}, s{48+t} offen sc1')
    for t in range(4): A(f'buffer_load_dwordx2 {vr(ML2+2*t,2)}, v{vb}, {WS}, s{48+t} offen offset:256 sc1')
    A('s_waitcnt vmcnt(0)')
    A(f'v_max_u32 v{T0}, v{W}, v{W+1}')
    for k in range(1,12): A(f'v_max3_u32 v{T0}, v{T0}, v{W+2*k}, v{W+2*k+1}')
    A(f'v_cmp_eq_u32 vcc, -1, v{T0}')
    spin_tail('L_ap','s_cbranch_vccnz')
    stamp(2)
    A(f'v_max3_f32 v{T0}, v{ML2}, v{ML2+2}, v{ML2+4}\nv_max_f32 v{T0}, v{T0}, v{ML2+6}')
    xrow('v_max_f32',T0,T0+1)
    for t in range(4): A(f'v_sub_f32 v{ML2+2*t}, v{ML2+2*t}, v{T0}')
    for t in range(4): A(f'v_exp_f32 v{ML2+2*t}, v{ML2+2*t}')
    A(f'v_mul_f32 v{T0}, v{ML2}, v{ML2+1}')
    for t in range(1,4): A(f'v_fmac_f32 v{T0}, v{ML2+2*t}, v{ML2+2*t+1}')
    for r in range(4): A(f'v_mul_f32 v{W+r}, v{W+r}, v{ML2}')
    for t in range(1,4):
        for r in range(4): A(f'v_fmac_f32 v{W+r}, v{W+4*t+r}, v{ML2+2*t}')
    xrow('v_add_f32',T0,T0+1)
    A(f'v_rcp_f32 v{T0}, v{T0}')
    A(f'v_permlane32_swap_b32 v{W}, v{W+2}\nv_permlane32_swap_b32 v{W+1}, v{W+3}\nv_add_f32 v{W}, v{W}, v{W+2}\nv_add_f32 v{W+1}, v{W+1}, v{W+3}')
    A(f'v_permlane16_swap_b32 v{W}, v{W+1}\nv_add_f32 v{W}, v{W}, v{W+1}\nv_mul_f32 v{W}, v{W}, v{T0}')
    rb(W,W)
    A(f'ds_write_b16_d16_hi v{va}, v{W} offset:{OVEC}\ns_waitcnt lgkmcnt(0)\ns_barrier')
    stamp(3)
    endwave()
    A('L_ffn:')
    A('s_lshr_b32 s54, s2, 5\ns_lshl_b32 s54, s54, 3\ns_and_b32 s49, s2, 7\ns_or_b32 s54, s54, s49\ns_lshl_b32 s54, s54, 2\ns_bfe_u32 s49, s2, 0x20003\ns_or_b32 s54, s54, s49')
    A('s_cmp_eq_u32 s3, 3\ns_cbranch_scc1 L_ffg')
    srd(36,'s16','s17',576*9216); srd(40,'s18','s19',4608*1152)
    W2=F
    slab_consts()
    A(f'v_lshrrev_b32 v{vc}, 1, v0\nv_mul_u32_u24 v{vc}, 9216, v{vc}\nv_and_b32 v{T0}, 1, v0\nv_lshl_add_u32 v{vc}, v{T0}, 4, v{vc}')
    A(f'v_bfe_u32 v{T0}, v0, 3, 1\nv_lshl_add_u32 v6, v1, 2, v{T0}\nv_mul_u32_u24 v6, 1152, v6\nv_and_b32 v{T0}, 7, v0\nv_lshl_add_u32 v6, v{T0}, 4, v6')
    A('s_mul_i32 s51, s54, 96\ns_lshl_b32 s49, s3, 5\ns_add_u32 s51, s51, s49\ns_mul_i32 s55, s3, 18432')
    A(f's_mul_i32 s56, s54, {48*1152}\ns_mul_i32 s49, s3, 384\ns_add_u32 s56, s56, s49')
    A(f's_mul_i32 s48, s54, 2304\ns_mul_i32 s49, s3, 768\ns_add_u32 s48, s48, s49\ns_add_u32 s48, s48, {C1}')
    if ffn_late: A('s_barrier')
    stamp(4)
    dma18(SA,vc,51,9216,'s55')
    for u in range(6):
        A(f's_add_u32 s49, s56, {(16*(u>>1)+2*(u&1))*1152}')
        for c in range(3): A(f'buffer_load_dwordx4 {vr(W2+12*u+4*c,4)}, v6, {SB}, s49 offen offset:{128*c} nt')
    A('s_waitcnt vmcnt(18)')
    trread('s55')
    A(f'v_lshlrev_b32 v{vb}, 4, v1\ns_lshl_b32 s49, s3, 3\nv_add_u32 v6, s49, v{va}')
    A('s_waitcnt vmcnt(0) lgkmcnt(0)')
    stamp(5)
    if not ffn_late: A('s_barrier')
    A('s_barrier')
    FR=220
    for t in range(9): A(f'ds_read_b128 {vr(FR+4*t,4)}, v{vb} offset:{VEC1+64*t}')
    for t in range(18):
        A(f's_waitcnt lgkmcnt({8 if t<=9 else 17-t})')
        A(f'v_mfma_f32_16x16x32_bf16 {vr(DD,4)}, {vr(W+4*t,4)}, {vr(FR+4*(t%9),4)}, {vr(DD,4) if t else 0}')
        if t<9: A(f'ds_read_b128 {vr(FR+4*t,4)}, v{vb} offset:{VEC1+64*(t+9)}')
    for r in range(4): A(f'v_max_f32 v{DD+r}, 0, v{DD+r}')
    A(f'v_cvt_pk_bf16_f32 v{T0}, v{DD}, v{DD+1}\nv_cvt_pk_bf16_f32 v{T0+1}, v{DD+2}, v{DD+3}')
    A('s_mov_b32 exec_lo, 0x00010001\ns_mov_b32 exec_hi, 0x00010001')
    A(f'ds_write_b64 v6, {vr(T0,2)} offset:{OVEC}\ns_mov_b64 exec, -1\ns_waitcnt lgkmcnt(0)\ns_barrier')
    stamp(6)
    slab_stage(6,W2,48)
    stamp(7)
    endwave()
    A('L_ffg:')
    mktag()
    gather_mod9(2)
    A(f'v_lshlrev_b32 v{vc}, 2, v0\ns_mov_b32 s48, {X1}\ns_mov_b32 s{sSpin}, 0\ns_barrier')
    stamp(1)
    A('L_xp:')
    for i in range(9): A(f'buffer_load_dword v{X+i}, v{vc}, {WS}, s48 offen offset:{256*i} sc1')
    A('s_waitcnt vmcnt(0)')
    A(f'v_max3_u32 v{T0}, v{X}, v{X+1}, v{X+2}')
    for i in (3,5,7): A(f'v_max3_u32 v{T0}, v{T0}, v{X+i}, v{X+i+1}')
    A(f'v_cmp_eq_u32 vcc, -1, v{T0}')
    spin_tail('L_xp','s_cbranch_vccnz')
    stamp(2)
    layernorm(); modulate(); write9(X,VEC1)
    A('s_waitcnt lgkmcnt(0)\ns_barrier')
    stamp(3)
    endwave()
    if diag:
        A('L_stampout:\ns_getreg_b32 s3, hwreg(HW_REG_HW_ID)')
        A('s_waitcnt vmcnt(0) lgkmcnt(0)\ns_mov_b64 exec, 1')
        A(f's_lshl_b32 s48, s2, 8\ns_lshl_b32 s49, s63, 5\ns_add_u32 s48, s48, s49\ns_add_u32 s48, s48, {STAMP}\nv_mov_b32 v2, 0')
        for k in range(8): A(f'v_mov_b32 v{4+k}, s{64+2*k}')
        A(f'buffer_store_dwordx4 v[4:7], v2, {WS}, s48 offen\nbuffer_store_dwordx4 v[8:11], v2, {WS}, s48 offen offset:16')
    A('L_end:\ns_endpgm')
    A('.section .rodata,"a"\n.p2align 6\n.amdhsa_kernel %s'%KNAME)
    A('.amdhsa_next_free_vgpr 256\n.amdhsa_next_free_sgpr 96\n.amdhsa_accum_offset 256\n.amdhsa_group_segment_fixed_size 0\n.amdhsa_kernarg_size 104')
    A('.amdhsa_user_sgpr_count 2\n.amdhsa_user_sgpr_kernarg_segment_ptr 1\n.amdhsa_system_sgpr_workgroup_id_x 1\n.amdhsa_float_denorm_mode_32 3\n.end_amdhsa_kernel')
    txt='\n'.join(L)
    if diag: txt=txt.replace('v_readfirstlane_b32 s3, v1\n','v_readfirstlane_b32 s3, v1\nv_readfirstlane_b32 s63, v1\n',1)
    return finalize([txt])
if __name__=='__main__':
    kw={}
    out='adaLN_cond__gqa_block_cached__dense_activation_relu__decode.s'
    for a in sys.argv[1:]:
        k,v=a.split('=',1)
        if k=='out': out=v
        else:
            try: kw[k]=eval(v)
            except Exception: kw[k]=v
    open(out,'w').write(gen(**kw))
```

```python
import sys, struct
from asmlib import finalize
KNAME='adaLN_cond__gqa_block_cached__dense_activation_relu__decode_kernel'
def f2u(x): return struct.unpack('<I',struct.pack('<f',x))[0]
LOG2E=f2u(1.4426950408889634); NLOG2E=f2u(-1.4426950408889634); SCALE=f2u(128**-0.5)
EPOCH=0; MODG=0x4000; QREG=0x1A000; CNT=0x38000; PART=0x40000; PAIR=0x170000; SCORE=0x200000
assert MODG+162*512<=QREG and QREG+192*512<=CNT
NFFN=72
CLR=PART+256*1536; X1=CLR; B1=X1+2304; C1=B1+64*2304; CLREND=C1+NFFN*2304
NCLR=6; assert CLR+54*NCLR*1024>=CLREND
STAMP=0x180000; WSBYTES=0x200000
def role(wg):
    g=wg>>4; i=(wg+g)&15
    if i<4: return ('wo',4*g+i)
    if i<8: return ('ffn',4*g+i-4)
    if i==8: return ('ffn',64+g) if g<8 else ('none',0)
    if i==9: return ('red',g)
    if i==10 and g<2: return ('red',16+g)
    return ('none',0)
VEC0=0; VEC1=VEC0+512; QL=VEC1+1152; PARTO=QL+512; PARTML=PARTO+4096; OVEC=PARTML+2048; PARL=OVEC+128; WBLK=8704; assert PARL+8<=WBLK
DPPM='row_mask:0xf bank_mask:0xf'
SPIN=200000

def gen(X=5, XV=None, NL=2, THR=5, diag=False, kvf='nt', wf='nt', w1_late=True, w2_late=True, qsleep=4, bar0=True, pre1=True,
        deep=0, XD=12, noclr=False, HT=None, jo=(0,8192,1024,9216)):
    L=[]
    if XV is None: XV=X
    SCL_=WBLK+max(73728,NL*65536); LDSBYTES=SCL_+16384
    assert w1_late or NL==0
    def A(s): L.append(s)
    uid=[0]
    def lab(p): uid[0]+=1; return f'L_{p}_{uid[0]}'
    def vr(b,n): return f'v[{b}:{b+n-1}]' if n>1 else f'v{b}'
    nst=[0]
    def stamp(k):
        if diag: A(f's_memrealtime s[{64+2*k}:{65+2*k}]\ns_waitcnt lgkmcnt(0)')
    def endwave():
        if diag: A('s_branch L_stampout')
        else: A('s_endpgm')
    def srd(d,lo,hi,n):
        A(f's_mov_b32 s{d}, {lo}\ns_mov_b32 s{d+1}, {hi}\ns_mov_b32 s{d+2}, {n}\ns_mov_b32 s{d+3}, 0x20000')
    def rb(d,s): A(f'v_cvt_pk_bf16_f32 v{d}, 0, v{s}')
    def xrow(op,v,t):
        for sw in ('v_permlane16_swap_b32','v_permlane32_swap_b32'):
            A(f'v_mov_b32 v{t}, v{v}\n{sw} v{v}, v{t}\n{op} v{v}, v{v}, v{t}')
    def wavesum(v,t):
        for d in ('quad_perm:[1,0,3,2]','quad_perm:[2,3,0,1]','row_half_mirror','row_mirror'):
            A(f'v_add_f32_dpp v{v}, v{v}, v{v} {d} {DPPM}')
        xrow('v_add_f32',v,t)
    WS='s[32:35]'; SA='s[36:39]'; SB='s[40:43]'; SC='s[44:47]'
    sTag=60; sSpin=61
    hdr=open('adaLN_cond__gqa_block_cached__dense_activation_relu__decode.s.ref').read().split('; Override launch')[0]
    A(hdr.rstrip())
    A(f'; @launch grid=(256,1,1) block=(512,1,1) lds={LDSBYTES}')
    A('.amdgcn_target "amdgcn-amd-amdhsa--gfx950"\n.text\n.globl %s\n.p2align 8\n.type %s,@function\n%s:'%(KNAME,KNAME,KNAME))
    A('s_cmp_ge_u32 s2, 256\ns_cbranch_scc1 L_end')
    A('s_load_dwordx16 s[4:19], s[0:1], 0\ns_load_dwordx8 s[20:27], s[0:1], 64\ns_load_dwordx2 s[28:29], s[0:1], 96')
    if diag:
        for k in range(8): A(f's_mov_b64 s[{64+2*k}:{65+2*k}], 0')
        A('s_memrealtime s[64:65]')
    A('v_lshrrev_b32 v1, 6, v0\nv_and_b32 v0, 63, v0\nv_readfirstlane_b32 s3, v1')
    A('v_lshrrev_b32 v1, 4, v0')
    A('s_cmp_ge_u32 s3, 4\ns_cbranch_scc1 L_helper')
    vK,vV=2,6; M=10; tt,al=14,15; Q0=16; Q1=20; O=24; D0=28; D1=32; BB=36
    s0,s1,SCr,p0,p1,pm0,pm1,mx,vm,vmn,ls=52,53,54,56,57,58,59,60,61,62,63
    vL,acc,tmp=44,46,47; vS=1
    BUF=64; NS=2
    sIss,sBase,sU,sI,sQm=48,49,56,45,80
    mf='v_mfma_f32_16x16x32_bf16'
    A(f'v_and_b32 v{vK}, 3, v0\nv_lshlrev_b32 v{vK}, 4, v{vK}\nv_bfe_u32 v{tt}, v0, 2, 2\nv_lshl_add_u32 v{vK}, v{tt}, 8, v{vK}\nv_lshl_add_u32 v{vK}, v1, 6, v{vK}')
    for j in range(1,4): A(f'v_add_u32 v{vK+j}, {jo[j]}, v{vK}')
    A(f's_lshl_b32 s{sBase}, s3, {11 if max(jo)>4096 else 12}\ns_sub_u32 s{sIss}, s{sBase}, 16384\ns_lshl_b32 s{sU}, s2, 20')
    A('s_mov_b32 s38, 0x100000\ns_mov_b32 s39, 0x20000\ns_mov_b32 s42, 0x100000\ns_mov_b32 s43, 0x20000')
    A('s_waitcnt lgkmcnt(0)')
    A(f's_add_u32 s36, s6, s{sU}\ns_addc_u32 s37, s7, 0\ns_add_u32 s40, s8, s{sU}\ns_addc_u32 s41, s9, 0')
    if bar0: A('s_barrier')
    vq=[]
    def vm_wait(name):
        if name not in vq: return
        i=vq.index(name); n=len(vq)-1-i
        A(f's_waitcnt vmcnt({n})'); del vq[:i+1]
    def ld(slot,n,isv,name,thr,lds=False):
        if n%4==0: A(f's_add_u32 s{sIss}, s{sIss}, 16384')
        if lds: A('s_add_u32 m0, m0, 1024')
        if len(vq)>=thr:
            A(f's_waitcnt vmcnt({thr-1})'); del vq[:len(vq)-(thr-1)]
        j=n&3
        if not lds: A(f'buffer_load_dwordx4 {vr(BUF+4*slot,4)}, v{(vV if isv else vK)+j}, {SB if isv else SA}, s{sIss} offen {kvf}')
        else: A(f'buffer_load_dwordx4 v{vK+j}, {SA}, s{sIss} offen {kvf} lds')
        vq.append(name)
    NP=3+NL
    for i in range(NP):
        for n in range(16):
            ld(16*i+n,n,False,(i,n),THR,i>=3)
            if i==0 and n==THR-1:
                srd(32,'s28','s29',WSBYTES)
                A(f's_mov_b32 s62, {LOG2E}')
                for c2 in range(1,4): A(f's_mov_b32 s{sQm+2*c2}, {0x11111111<<c2}\ns_mov_b32 s{sQm+2*c2+1}, {0x11111111<<c2}')
                A(f'v_lshlrev_b32 v{vV}, 4, v0')
                for j in range(1,4): A(f'v_add_u32 v{vV+j}, {jo[j]}, v{vV}')
                A(f's_mul_i32 s{sU}, s3, {NL*16384}\ns_add_u32 s{sU}, s{sU}, {WBLK}\nv_add_u32 v{vL}, s{sU}, v{vV}\ns_sub_u32 m0, s{sU}, 1024')
                A(f'v_and_b32 v{tt}, 1, v0\nv_lshlrev_b32 v{tt}, 4, v{tt}\nv_mov_b32 v{al}, 0xffff\nv_lshlrev_b32 v{tt}, v{tt}, v{al}\nv_bfe_u32 v{al}, v0, 1, 2')
                for w in range(4):
                    A(f'v_cmp_eq_u32 vcc, {w}, v{al}\nv_cndmask_b32 v{M+w}, 0, v{tt}, vcc')
                A(f'v_bfe_u32 v{mx}, v0, 3, 1\nv_lshlrev_b32 v{mx}, 4, v{mx}\nv_lshl_add_u32 v{mx}, v1, 2, v{mx}\nv_and_b32 v{tt}, 3, v0\nv_add_lshl_u32 v{mx}, v{mx}, v{tt}, 4')
                for r in range(4): A(f'v_mov_b32 v{O+r}, 0')
                A(f'v_mov_b32 v{ls}, 0\nv_mov_b32 v{vm}, {f2u(-1e38)}\nv_mul_f32 v{vmn}, {NLOG2E}, v{vm}')
                A(f's_lshl_b32 s{sU}, s3, 12\ns_add_u32 s{sU}, s{sU}, {SCL_}\nv_lshl_add_u32 v{vS}, v0, 2, s{sU}')
    stamp(1)
    A('s_barrier')
    A(f'ds_read_b128 {vr(Q1,4)}, v{mx} offset:{QL}')
    A(f'v_and_b32 v{tt}, 4, v0\nv_cmp_eq_u32 vcc, 0, v{tt}')
    A('s_waitcnt lgkmcnt(0)')
    for r in range(4): A(f'v_cndmask_b32 v{Q0+r}, 0, v{Q1+r}, vcc')
    for r in range(4): A(f'v_cndmask_b32 v{Q1+r}, v{Q1+r}, 0, vcc')
    stamp(2)
    def kred(D,s):
        A(f'v_mov_b32_dpp v{s}, v{D} quad_perm:[0,0,0,0] {DPPM}')
        for q in (1,2,3): A(f'v_add_f32_dpp v{s}, v{D+q}, v{s} quad_perm:[{q},{q},{q},{q}] {DPPM}')
        rb(s,s); A(f'v_mul_f32 v{s}, {SCALE}, v{s}')
    def kfin(c):
        kred(D1,s1)
        if c==0: A(f'v_cvt_pk_bf16_f32 v{acc}, v{s0}, v{s1}')
        else: A(f'v_cvt_pk_bf16_f32 v{tmp}, v{s0}, v{s1}\nv_cndmask_b32 v{acc}, v{acc}, v{tmp}, s[{sQm+2*c}:{sQm+2*c+1}]')
    def kround(slot0,uname,issue,lds=False):
        for n in range(16):
            j=n&3
            issue(n)
            if lds:
                if j==0: A(f's_waitcnt lgkmcnt({12-n})')
            else: vm_wait((uname,n))
            D=D0 if j<2 else D1
            A(f'{mf} {vr(D,4)}, {vr(BUF+4*(slot0+n),4)}, {vr(Q1 if j&1 else Q0,4)}, {vr(D,4) if j&1 else 0}')
            if j==1 and n>4: kfin((n>>2)-1)
            if j==3: kred(D0,s0)
        kfin(3)
        A(f'ds_write_b32 v{vS}, v{acc}\nv_add_u32 v{vS}, 256, v{vS}')
    pend=list(range(16))
    for i in range(NP):
        def iss(n,i=i):
            k=0
            if i==0 and n==4: k=4
            elif (i>0 or n>4) and n%4==0: k=1
            if i==NP-1 and n%4==0: k=max(k,-(-len(pend)//(4-n//4)))
            for _ in range(min(k,len(pend))):
                m=pend.pop(0); assert i>0 or m<n
                ld(m,m,False,(NP,m),X)
        if i>=3:
            vm_wait((i,15))
            for n in range(16): A(f'ds_read_b128 {vr(BUF+64+4*n,4)}, v{vL} offset:{(i-3)*16384+1024*n}')
        kround(16*i if i<3 else 16,i,iss,i>=3)
    assert not pend
    stamp(3)
    def mkiss(cur,curv,nxt,nxtv,x,xn=None,frm=0):
        done=[max(frm,0)]
        def iss(n):
            hi=n+x if (xn is None or n<15) else 15+xn
            if xn is not None and xn<x: hi=min(hi,15+xn)
            while done[0]<=hi:
                t=done[0]; done[0]+=1
                if t<16: ld(t,t,curv,(cur,t),x)
                elif nxt is not None:
                    if t==16 and nxtv and not curv: A(f's_sub_u32 s{sIss}, s{sBase}, 16384')
                    ld(t-16,t-16,nxtv,(nxt,t-16),max(x,xn or 0))
        return iss
    kround(0,NP,mkiss(NP,False,'a',False,X,frm=16))
    A(f's_mov_b32 s{sI}, {16-NP-2}\nL_kloop:')
    assert vq==[('a',t) for t in range(X)][-len(vq):], vq
    vq[:]=[('a',t) for t in range(X)]
    kround(0,'a',mkiss('a',False,'b',False,X,frm=X))
    assert vq==[('b',t) for t in range(X)], vq
    A(f's_sub_u32 s{sI}, s{sI}, 1\ns_cmp_lg_u32 s{sI}, 0\ns_cbranch_scc1 L_kloop')
    A(f'v_subrev_u32 v{SCr+1}, {15*256}, v{vS}\nds_read_b32 v{SCr}, v{SCr+1}')
    kround(0,'b',mkiss('b',False,'v',True,X,XV,frm=X))
    stamp(6)
    ool=[]
    def vround(cur,issue):
        rs=lab('rs'); ct=lab('ct'); ool.append((rs,ct))
        A('s_waitcnt lgkmcnt(0)')
        A(f'v_lshlrev_b32 v{s0}, 16, v{SCr}\nv_and_b32 v{s1}, 0xffff0000, v{SCr}\nv_add_u32 v{SCr+1}, 256, v{SCr+1}')
        A(f'v_max_f32 v{mx}, v{s0}, v{s1}\nv_cmp_gt_f32 vcc, v{mx}, v{vm}\nds_read_b32 v{SCr}, v{SCr+1}\ns_cbranch_vccnz {rs}\n{ct}:')
        A(f'v_fma_f32 v{s0}, v{s0}, s62, v{vmn}\nv_fma_f32 v{s1}, v{s1}, s62, v{vmn}\nv_exp_f32 v{s0}, v{s0}\nv_exp_f32 v{s1}, v{s1}')
        A(f'v_cvt_pk_bf16_f32 v{p0}, v{s0}, v{s0}\nv_cvt_pk_bf16_f32 v{p1}, v{s1}, v{s1}')
        A(f'v_add_f32 v{ls}, v{ls}, v{s0}\nv_add_f32 v{ls}, v{ls}, v{s1}')
        A(f'v_mov_b32_dpp v{pm0}, v{p0} row_half_mirror {DPPM}\nv_mov_b32_dpp v{pm1}, v{p1} row_half_mirror {DPPM}')
        for n in range(16):
            c=n>>2; t=n&3; B=BB+4*(n&1)
            for w in sorted(range(4),key=lambda w:(w>>1)!=(t&1)):
                own=(w>>1)==(t&1); src=((p0,p1) if own else (pm0,pm1))[t>>1]; q=c if own else 3-c
                A(f'v_and_b32_dpp v{B+w}, v{src}, v{M+w} quad_perm:[{q},{q},{q},{q}] {DPPM}')
            issue(n)
            vm_wait((cur,n))
            A(f'{mf} {vr(O,4)}, {vr(BUF+4*n,4)}, {vr(B,4)}, {vr(O,4)}')
    def vloop(name,cnt,x):
        if cnt<=0: return
        A(f's_mov_b32 s{sI}, {cnt}\n{name}:')
        assert vq==[('v',t) for t in range(x)][-len(vq):], vq
        vq[:]=[('v',t) for t in range(x)]
        vround('v',mkiss('v',True,'u',True,x,frm=x))
        assert vq==[('u',t) for t in range(x)], vq
        vq[:]=[('v',t) for t in range(x)]
        A(f's_sub_u32 s{sI}, s{sI}, 1\ns_cmp_lg_u32 s{sI}, 0\ns_cbranch_scc1 {name}')
    if deep>=2:
        vloop('L_vloop',16-deep,XV)
        vround('v',mkiss('v',True,'u',True,XD,frm=XV)); vq[:]=[('v',t) for t in range(XD)]
        vloop('L_vloop2',deep-2,XD)
        vround('v',mkiss('v',True,None,True,XD,frm=XD))
    else:
        vloop('L_vloop',15,XV)
        vround('v',mkiss('v',True,None,True,XD if deep else XV,frm=XV))
    A('L_sdone:')
    stamp(4)
    A('v_lshrrev_b32 v1, 4, v0')
    A(f's_lshl_b32 s57, s3, 10\nv_add_u32 v{tt}, s57, v{vV}\nv_lshrrev_b32 v{al}, 1, v{tt}')
    A(f'v_mul_f32 v{vmn}, -1.0, v{vmn}')
    A(f'ds_write_b128 v{tt}, {vr(O,4)} offset:{PARTO}\nds_write_b64 v{al}, {vr(vmn,2)} offset:{PARTML}')
    A('s_waitcnt lgkmcnt(0)\ns_barrier')
    A('s_cmp_lg_u32 s3, 0\ns_cbranch_scc1 L_wend')
    R=BUF+32*NS; ML=R+16
    for w in range(4): A(f'ds_read_b64 {vr(ML+2*w,2)}, v{al} offset:{PARTML+512*w}')
    for w in range(4): A(f'ds_read_b128 {vr(R+4*w,4)}, v{vV} offset:{PARTO+1024*w}')
    A(f'v_bfe_u32 v{s0}, v0, 3, 1\nv_lshrrev_b32 v{s1}, 5, v0\nv_lshl_add_u32 v{s0}, v{s0}, 1, v{s1}\nv_mul_u32_u24 v{s0}, 384, v{s0}')
    A(f'v_and_b32 v{s1}, 1, v1\nv_lshl_add_u32 v{p0}, v{s1}, 7, v{s0}\nv_and_b32 v{s1}, 7, v0\nv_lshl_add_u32 v{p0}, v{s1}, 4, v{p0}')
    A(f's_mul_i32 s57, s2, 1536\ns_add_u32 s57, s57, {PART}')
    A('s_waitcnt lgkmcnt(4)')
    A(f'v_max3_f32 v{vmn}, v{ML}, v{ML+2}, v{ML+4}\nv_max_f32 v{vmn}, v{vmn}, v{ML+6}')
    for w in range(4): A(f'v_sub_f32 v{ML+2*w}, v{ML+2*w}, v{vmn}')
    for w in range(4): A(f'v_exp_f32 v{ML+2*w}, v{ML+2*w}')
    A('s_waitcnt lgkmcnt(0)')
    for r in range(4): A(f'v_mul_f32 v{O+r}, v{R+r}, v{ML}')
    for w in range(1,4):
        for r in range(4): A(f'v_fmac_f32 v{O+r}, v{R+4*w+r}, v{ML+2*w}')
    for r in range(4): A(f'v_min_u32 v{O+r}, -2, v{O+r}')
    A(f'buffer_store_dwordx4 {vr(O,4)}, v{p0}, {WS}, s57 offen sc1')
    A(f'v_mul_f32 v{ls}, v{ML}, v{ML+1}')
    for w in range(1,4): A(f'v_fmac_f32 v{ls}, v{ML+2*w}, v{ML+2*w+1}')
    for d in ('quad_perm:[1,0,3,2]','quad_perm:[2,3,0,1]','row_half_mirror'): A(f'v_add_f32_dpp v{ls}, v{ls}, v{ls} {d} {DPPM}')
    xrow('v_add_f32',ls,tt)
    A(f'v_min_u32 v{vmn}, -2, v{vmn}\nv_min_u32 v{ls}, -2, v{ls}')
    A('s_mov_b32 exec_lo, 0x00000101\ns_mov_b32 exec_hi, 0x00000101')
    A(f'buffer_store_dwordx2 {vr(vmn,2)}, v{s0}, {WS}, s57 offen offset:256 sc1')
    A('s_mov_b64 exec, -1\ns_barrier')
    stamp(5)
    A('L_wend:')
    endwave()
    for rs,ct in ool:
        A(f'{rs}:\nv_max_f32 v{vm}, v{mx}, v{vm}')
        for d in ('quad_perm:[1,0,3,2]','quad_perm:[2,3,0,1]','row_half_mirror'): A(f'v_max_f32_dpp v{vm}, v{vm}, v{vm} {d} {DPPM}')
        xrow('v_max_f32',vm,tt)
        A(f'v_mul_f32 v{tt}, {NLOG2E}, v{vm}\nv_sub_f32 v{al}, v{tt}, v{vmn}\nv_exp_f32 v{al}, v{al}\nv_mov_b32 v{vmn}, v{tt}')
        A(f'v_mul_f32 v{ls}, v{ls}, v{al}')
        for r in range(4): A(f'v_mul_f32 v{O+r}, v{O+r}, v{al}')
        A(f's_branch {ct}')
    va,vb,vc,vso,vd,vg=2,3,4,5,6,7
    SEL=8; P=12; BT=36; T0=44; W=64; DD=208
    X=160; G=64
    EX8='s_mov_b32 exec_lo, 0x00ff00ff\ns_mov_b32 exec_hi, 0x00ff00ff'
    MF='v_mfma_f32_16x16x32_bf16'
    def spin_tail(loop,cond_branch,sleep=0):
        done=lab('pd')
        A(f's_add_u32 s{sSpin}, s{sSpin}, 1\ns_cmp_gt_u32 s{sSpin}, {SPIN}\ns_cbranch_scc1 {done}')
        if sleep: A(f's_cbranch_vccz {done}\ns_sleep {sleep}\ns_branch {loop}\n{done}:')
        else: A(f'{cond_branch} {loop}\n{done}:')
    def tagcheck(tags):
        if len(tags)==1:
            A(f'v_cmp_ne_u32 vcc, s{sTag}, v{tags[0]}'); return
        for op,d in (('min',T0),('max',T0+1)):
            t=list(tags)
            if len(t)%2==0: A(f'v_{op}_u32 v{d}, v{t[0]}, v{t[1]}'); t=t[2:]
            else: A(f'v_{op}3_u32 v{d}, v{t[0]}, v{t[1]}, v{t[2]}'); t=t[3:]
            for i in range(0,len(t),2): A(f'v_{op}3_u32 v{d}, v{d}, v{t[i]}, v{t[i+1]}')
        A(f'v_cmp_ne_u32 s[30:31], s{sTag}, v{T0}\nv_cmp_ne_u32 vcc, s{sTag}, v{T0+1}\ns_or_b64 vcc, vcc, s[30:31]')
    def gamma8(d):
        A(f'v_and_b32 v{d}, 48, v0\nv_and_b32 v{T0}, 7, v0\nv_lshl_add_u32 v{d}, v{T0}, 1, v{d}\nv_bfe_u32 v{T0}, v0, 3, 1\nv_add_lshl_u32 v{d}, v{d}, v{T0}, 3')
    def gather_gran(items,base,vaddr,sleep=0):
        lp=lab('gm'); A(f's_mov_b32 s{sSpin}, 0\n{lp}:')
        for n,(sg,imm) in enumerate(items): A(f'buffer_load_dwordx2 {vr(base+2*n,2)}, v{vaddr}, {WS}, s{sg} offen offset:{imm} sc1')
        A('s_waitcnt vmcnt(0)')
        tagcheck([base+2*n+1 for n in range(len(items))])
        spin_tail(lp,'s_cbranch_vccnz',sleep)
    def layernorm(X,n):
        s,t,mean=T0,T0+1,T0+2; Dv=T0+4
        A(f'v_add_f32 v{s}, v{X}, v{X+1}')
        for i in range(2,9): A(f'v_add_f32 v{s}, v{s}, v{X+i}')
        wavesum(s,t)
        A(f'v_mul_f32 v{mean}, {f2u(1/576)}, v{s}')
        for i in range(9): A(f'v_sub_f32 v{Dv+i}, v{X+i}, v{mean}')
        A(f'v_mul_f32 v{s}, v{Dv}, v{Dv}')
        for i in range(1,9): A(f'v_fmac_f32 v{s}, v{Dv+i}, v{Dv+i}')
        rb(mean,mean)
        for i in range(n): A(f'v_sub_f32 v{X+i}, v{X+i}, v{mean}')
        wavesum(s,t)
        for i in range(n): rb(X+i,X+i)
        A(f'v_mul_f32 v{s}, {f2u(1/576)}, v{s}'); rb(s,s)
        A(f'v_add_f32 v{s}, {f2u(1e-5)}, v{s}'); rb(s,s)
        A(f'v_sqrt_f32 v{s}, v{s}'); rb(s,s)
        A(f'v_rcp_f32 v{s}, v{s}')
        for i in range(n): A(f'v_mul_f32 v{X+i}, v{X+i}, v{s}')
        for i in range(n): rb(X+i,X+i)
    def modulate(X,n,SH,SC_):
        for i in range(n): A(f'v_mul_f32 v{X+i}, v{X+i}, v{SC_[i]}')
        for i in range(n): rb(X+i,X+i)
        for i in range(n): A(f'v_add_f32 v{X+i}, v{X+i}, v{SH[i]}')
        for i in range(n): rb(X+i,X+i)
    def sel_consts():
        A(f'v_bfe_u32 v{T0}, v0, 3, 1\nv_mul_u32_u24 v{T0}, 0x0202, v{T0}\nv_add_u32 v{T0}, 0x0100, v{T0}')
        A(f'v_or_b32 v{T0+1}, 0x0c0c0000, v{T0}\nv_lshlrev_b32 v{T0}, 16, v{T0}\nv_or_b32 v{T0}, 0x0c0c, v{T0}')
        A(f'v_and_b32 v{T0+2}, 1, v0\nv_cmp_eq_u32 vcc, 1, v{T0+2}\nv_cndmask_b32 v{T0}, v{T0+1}, v{T0}, vcc')
        A(f'v_bfe_u32 v{T0+2}, v0, 1, 2\nv_mov_b32 v{T0+1}, 0x0c0c0c0c')
        for w in range(4): A(f'v_cmp_eq_u32 vcc, {w}, v{T0+2}\nv_cndmask_b32 v{SEL+w}, v{T0+1}, v{T0}, vcc')
    def mkb(u):
        for w in range(4): A(f'v_perm_b32 v{BT+4*(u&1)+w}, v{P+u}, v{P+u}, v{SEL+w}')
    def job_loads(srdn,rowbytes,soff):
        A(f'v_mul_u32_u24 v{vc}, 48, v1\nv_bfe_u32 v{T0}, v0, 3, 1\nv_add_u32 v{vc}, v{vc}, v{T0}\nv_mul_u32_u24 v{vc}, {rowbytes}, v{vc}\nv_and_b32 v{T0}, 7, v0\nv_lshl_add_u32 v{vc}, v{T0}, 4, v{vc}')
        for u in range(24):
            if u: A(f's_add_u32 s{soff}, s{soff}, {2*rowbytes}')
            A(f'buffer_load_dwordx4 {vr(W+4*u,4)}, v{vc}, {srdn}, s{soff} offen {wf}')
    def job_consts():
        sel_consts()
        A(f'v_and_b32 v{vso}, 1, v1\nv_lshlrev_b32 v{vso}, 8, v{vso}\nv_and_b32 v{T0}, 7, v0\nv_lshl_add_u32 v{vso}, v{T0}, 4, v{vso}\nv_lshrrev_b32 v{T0}, 5, v0\nv_lshl_add_u32 v{vso}, v{T0}, 7, v{vso}')
        A(f'v_mul_u32_u24 v{vb}, 96, v1')
    def job_run(X,vec,soff,progressive):
        for i in range(3): A(f'ds_write_b16_d16_hi v{va}, v{X+i} offset:{vec+128*i}')
        for i in range(6): A(f'ds_read_b128 {vr(P+4*i,4)}, v{vb} offset:{vec+16*i}')
        A('s_waitcnt lgkmcnt(5)')
        mkb(0)
        for u in range(24):
            if u+1<24:
                if (u+1)%4==0: A(f's_waitcnt lgkmcnt({5-(u+1)//4})')
                mkb(u+1)
            if progressive: A(f's_waitcnt vmcnt({23-u+NCLR})')
            A(f'{MF} {vr(DD,4)}, {vr(W+4*u,4)}, {vr(BT+4*(u&1),4)}, {vr(DD,4) if u else 0}')
        A(f'v_mov_b32 v{DD+5}, s{sTag}\nv_mov_b32 v{DD+7}, s{sTag}')
        A(f'v_permlane32_swap_b32 v{DD}, v{DD+2}\nv_permlane32_swap_b32 v{DD+1}, v{DD+3}')
        A(f'v_add_f32_dpp v{DD+4}, v{DD+2}, v{DD} row_ror:8 {DPPM}\nv_add_f32_dpp v{DD+6}, v{DD+3}, v{DD+1} row_ror:8 {DPPM}')
        if progressive: A('s_waitcnt vmcnt(0)')
        A(EX8)
        A(f'buffer_store_dwordx4 {vr(DD+4,4)}, v{vso}, {WS}, s{soff} offen sc1\ns_mov_b64 exec, -1')
    def mktag(): A(f's_waitcnt lgkmcnt(0)\ns_mul_i32 s{sTag}, s{sTag}, 1664525\ns_add_u32 s{sTag}, s{sTag}, 1013904223')
    A('L_helper:\ns_setprio 3\ns_sub_u32 s3, s3, 4')
    A(f'v_lshlrev_b32 v{va}, 1, v0')
    A('s_waitcnt lgkmcnt(0)')
    A(f's_load_dword s{sTag}, s[28:29], {EPOCH}')
    srd(32,'s28','s29',WSBYTES)
    A('s_cmp_eq_u32 s3, 1\ns_cbranch_scc1 L_h1\ns_cmp_eq_u32 s3, 2\ns_cbranch_scc1 L_h2\ns_cmp_eq_u32 s3, 3\ns_cbranch_scc1 L_h3')
    A('s_cmp_lt_u32 s2, 54\ns_cbranch_scc0 L_hb0')
    A(f's_mul_i32 s49, s2, {(65536+17)//18}\ns_lshr_b32 s49, s49, 16\ns_mul_i32 s48, s49, 18\ns_sub_u32 s48, s2, s48')
    A(f's_mul_i32 s52, s2, {NCLR*1024}\ns_add_u32 s52, s52, {WSBYTES if noclr else CLR}')
    A('L_h0j:')
    srd(36,'s20','s21',1152); srd(40,'s22','s23',576*6912)
    A('s_mul_i32 s50, s49, 384')
    for i in range(3): A(f'v_mov_b32 v{X+i}, 0')
    for i in range(3): A(f'buffer_load_short_d16_hi v{X+i}, v{va}, {SA}, s50 offen offset:{128*i}')
    A(f's_mul_i32 s51, s49, {192*6912}\ns_lshl_b32 s50, s48, 7\ns_add_u32 s51, s51, s50')
    job_loads(SB,6912,51)
    A(f'v_lshlrev_b32 v{vb}, 4, v0')
    for r in range(4): A(f'v_mov_b32 v{DD+8+r}, -1')
    for t in range(NCLR):
        if t==4: A('s_add_u32 s52, s52, 4096')
        A(f'buffer_store_dwordx4 {vr(DD+8,4)}, v{vb}, {WS}, s52 offen offset:{(t%4)*1024} sc1')
    job_consts()
    A(f's_mul_i32 s50, s49, 54\ns_add_u32 s50, s50, s48\ns_lshl_b32 s50, s50, 9\ns_add_u32 s50, s50, {MODG}')
    A(f's_waitcnt vmcnt({24+NCLR})')
    A('s_cmp_eq_u32 s3, 3\ns_cbranch_scc1 L_h0k')
    if bar0: A('s_barrier')
    mktag()
    A('L_h0k:')
    E_,R_,Q_,U_=X+4,X+8,X+12,X+16
    for i in range(3): A(f'v_mul_f32 v{E_+i}, {NLOG2E}, v{X+i}')
    for i in range(3): A(f'v_exp_f32 v{E_+i}, v{E_+i}')
    for i in range(3): A(f'v_add_f32 v{E_+i}, 1.0, v{E_+i}')
    for i in range(3): A(f'v_rcp_f32 v{R_+i}, v{E_+i}')
    for i in range(3): A(f'v_mul_f32 v{Q_+i}, v{X+i}, v{R_+i}')
    for i in range(3): A(f'v_fma_f32 v{U_+i}, -v{Q_+i}, v{E_+i}, v{X+i}')
    for i in range(3): A(f'v_fma_f32 v{Q_+i}, v{U_+i}, v{R_+i}, v{Q_+i}')
    for i in range(3): A(f'v_div_fixup_f32 v{X+i}, v{Q_+i}, v{E_+i}, v{X+i}')
    for i in range(3): rb(X+i,X+i)
    stamp(1)
    job_run(X,VEC0,50,True)
    stamp(2)
    A('s_cmp_eq_u32 s3, 3\ns_cbranch_scc1 L_roles')
    A('s_branch L_hb1')
    A('L_h1:\ns_cmp_lt_u32 s2, 64\ns_cbranch_scc1 L_hb0')
    srd(36,'s4','s5',1152); srd(40,'s10','s11',576*8192)
    A('s_and_b32 s48, s2, 63\ns_lshr_b32 s49, s2, 6\ns_sub_u32 s49, s49, 1')
    A('s_mul_i32 s50, s49, 384\ns_add_u32 s51, s50, 384\ns_cmp_eq_u32 s51, 1152\ns_cselect_b32 s51, 0, s51\ns_add_u32 s52, s51, 384\ns_cmp_eq_u32 s52, 1152\ns_cselect_b32 s52, 0, s52')
    for i in range(9): A(f'v_mov_b32 v{X+i}, 0')
    for i in range(9): A(f'buffer_load_short_d16_hi v{X+i}, v{va}, {SA}, s{50+i//3} offen offset:{128*(i%3)}')
    A(f's_mul_i32 s51, s49, {192*8192}\ns_lshl_b32 s50, s48, 7\ns_add_u32 s51, s51, s50')
    job_loads(SB,8192,51)
    A(f'v_lshlrev_b32 v{vb}, 4, v0')
    for r in range(4): A(f'v_mov_b32 v{DD+8+r}, -1')
    A(f's_mul_i32 s50, s48, 3\ns_add_u32 s50, s50, s49\ns_lshl_b32 s50, s50, 11\ns_add_u32 s50, s50, {WSBYTES if noclr else PART}')
    for t in range(2): A(f'buffer_store_dwordx4 {vr(DD+8,4)}, v{vb}, {WS}, s50 offen offset:{t*1024} sc1')
    job_consts(); gamma8(vg)
    A(f's_lshl_b32 s56, s49, 6\ns_add_u32 s56, s56, s48\ns_lshl_b32 s56, s56, 9\ns_add_u32 s56, s56, {QREG}')
    A(f's_mul_i32 s57, s49, 1536')
    for kk in range(3):
        for part in range(2): A(f's_add_u32 s{50+2*kk+part}, s57, {MODG+(kk*54+9*part)*512}')
    mktag()
    A('s_waitcnt vmcnt(26)')
    if bar0: A('s_barrier')
    layernorm(X,3)
    stamp(1)
    GG=X+10
    if pre1: gather_gran([(55,1024)],GG,vg,2)
    gather_gran([(50+2*kk+part,512*i) for kk in range(3) for part in range(2) for i in range(3)],GG,vg)
    stamp(2)
    for kk in (1,2):
        for n in range(6): A(f'v_add_f32 v{GG+2*n}, v{GG+2*n}, v{GG+12*kk+2*n}')
    for n in range(6): rb(GG+2*n,GG+2*n)
    for i in range(3): A(f'v_add_f32 v{GG+6+2*i}, 1.0, v{GG+6+2*i}')
    for i in range(3): rb(GG+6+2*i,GG+6+2*i)
    modulate(X,3,[GG+2*i for i in range(3)],[GG+6+2*i for i in range(3)])
    job_run(X,VEC1,56,False)
    stamp(3)
    A('s_branch L_hb1')
    A('L_h2:')
    A(f'v_lshlrev_b32 v{vc}, 4, v0\nv_lshrrev_b32 v{vb}, 5, v0\nv_lshlrev_b32 v{vb}, 6, v{vb}\nv_and_b32 v{T0}, 24, v0\nv_lshl_add_u32 v{vb}, v{T0}, 1, v{vb}\nv_and_b32 v{T0}, 7, v0\nv_add_lshl_u32 v{vb}, v{vb}, v{T0}, 1')
    A(f's_lshr_b32 s48, s2, 4\ns_lshl_b32 s48, s48, 11\ns_add_u32 s48, s48, {QREG}\ns_add_u32 s49, s48, {64*512}\ns_add_u32 s50, s49, {64*512}')
    if bar0: A('s_barrier')
    mktag()
    if pre1:
        A(f'v_lshlrev_b32 v{vg}, 3, v0\nv_and_b32 v{vg}, 127, v{vg}')
        gather_gran([(50,1920)],W,vg,qsleep)
    A(f's_mov_b32 s{sSpin}, 0\nL_qp:')
    for kk in range(3):
        for h in range(2): A(f'buffer_load_dwordx4 {vr(W+8*kk+4*h,4)}, v{vc}, {WS}, s{48+kk} offen offset:{1024*h} sc1')
    A('s_waitcnt vmcnt(0)')
    tagcheck([W+2*n+1 for n in range(12)])
    spin_tail('L_qp','s_cbranch_vccnz',0 if pre1 else qsleep)
    for kk in (1,2):
        for n in range(4): A(f'v_add_f32 v{W+2*n}, v{W+2*n}, v{W+8*kk+2*n}')
    for n in range(4): rb(W+2*n,W+2*n)
    for n in range(4): A(f'ds_write_b16_d16_hi v{vb}, v{W+2*n} offset:{QL+256*(n>>1)+16*(n&1)}')
    A('s_waitcnt lgkmcnt(0)')
    stamp(1)
    A('s_branch L_hb1')
    A('L_h3:')
    if bar0: A('s_barrier')
    mktag()
    A('s_barrier')
    A('s_lshr_b32 s48, s2, 4\ns_add_u32 s49, s2, s48\ns_and_b32 s49, s49, 15\ns_cmp_lt_u32 s49, 9\ns_cbranch_scc1 L_roles')
    A('s_mul_i32 s48, s48, 7\ns_add_u32 s50, s48, s49\ns_sub_u32 s50, s50, 9\ns_cmp_ge_u32 s50, 108\ns_cbranch_scc1 L_roles')
    A(f's_mul_i32 s49, s50, {(65536+35)//36}\ns_lshr_b32 s49, s49, 16\ns_mul_i32 s48, s49, 36\ns_sub_u32 s48, s50, s48\ns_add_u32 s48, s48, 18')
    A(f's_mov_b32 s52, {WSBYTES}\ns_branch L_h0j')
    A('L_hb0:')
    if bar0: A('s_barrier')
    A('L_hb1:\ns_barrier\nL_roles:')
    A('s_lshr_b32 s48, s2, 4\ns_add_u32 s49, s2, s48\ns_and_b32 s49, s49, 15')
    A('s_lshl_b32 s54, s48, 2\ns_add_u32 s54, s54, s49\ns_cmp_lt_u32 s49, 4\ns_cbranch_scc1 L_wo')
    A('s_sub_u32 s54, s54, 4\ns_cmp_lt_u32 s49, 8\ns_cbranch_scc1 L_ffn')
    A('s_lshl_b32 s50, s49, 4\ns_add_u32 s50, s50, s48\ns_sub_u32 s54, s50, 64\ns_cmp_lt_u32 s54, 72\ns_cbranch_scc1 L_ffn')
    A('s_sub_u32 s54, s50, 144\ns_cmp_ge_u32 s54, 18\ns_cbranch_scc1 L_wend')
    A('s_cmp_lg_u32 s3, 3\ns_cbranch_scc1 L_wend')
    srd(36,'s4','s5',1152); srd(40,'s24','s25',1152)
    vcol,vx,vga,vgb,vo=5,6,10,12,24
    A(f'v_and_b32 v{T0+2}, 7, v0\nv_lshl_add_u32 v{vcol}, v1, 3, v{T0+2}')
    A(f's_lshl_b32 s55, s54, 6\nv_lshlrev_b32 v{va}, 1, v{vcol}\nv_mov_b32 v{vx}, 0')
    A(f'buffer_load_short_d16_hi v{vx}, v{va}, {SA}, s55 offen')
    A(f'v_lshrrev_b32 v{vc}, 1, v1\nv_lshlrev_b32 v{vc}, 4, v{vc}\nv_lshl_add_u32 v{vc}, v{T0+2}, 1, v{vc}\nv_and_b32 v{T0}, 1, v1\nv_add_lshl_u32 v{vc}, v{vc}, v{T0}, 3')
    A('s_lshl_b32 s57, s54, 8')
    for kk in range(3):
        for part in range(2): A(f's_add_u32 s{48+2*kk+part}, s57, {MODG+(kk*54+18+27*part)*512}')
    gather_gran([(48+n,0) for n in range(6)],vga,vc,8)
    for kk in (1,2): A(f'v_add_f32 v{vga}, v{vga}, v{vga+4*kk}\nv_add_f32 v{vgb}, v{vgb}, v{vgb+4*kk}')
    rb(vga,vga); rb(vgb,vgb)
    A(f'v_lshrrev_b32 v{vo}, 3, v0\nv_mul_u32_u24 v{vo}, 2304, v{vo}\nv_lshl_add_u32 v{vo}, v{T0+2}, 4, v{vo}')
    for t in range(1,9): A(f'v_add_u32 v{vo+t}, {t*8*2304}, v{vo}')
    A(f's_lshl_b32 s48, s54, 7\ns_add_u32 s49, s48, {C1}\ns_add_u32 s50, s48, {X1}\ns_add_u32 s48, s48, {B1}')
    A(f'v_lshlrev_b32 v{vb}, 2, v{vcol}')
    A('s_barrier\ns_barrier')
    stamp(1)
    def reduce_gather(n,soff,gate):
        lp=lab('rp'); A(f's_mov_b32 s{sSpin}, 0\n{lp}:')
        for t in range(n): A(f'buffer_load_dwordx4 {vr(W+4*t,4)}, v{vo+t}, {WS}, s{soff} offen sc1')
        A('s_waitcnt vmcnt(0)')
        A(f'v_max_u32 v{T0}, v{W}, v{W+1}')
        for k in range(1,2*n): A(f'v_max3_u32 v{T0}, v{T0}, v{W+2*k}, v{W+2*k+1}')
        A(f'v_cmp_eq_u32 vcc, -1, v{T0}')
        spin_tail(lp,'s_cbranch_vccnz')
        for t in range(1,n):
            for r in range(4): A(f'v_add_f32 v{W+r}, v{W+r}, v{W+4*t+r}')
        A(f'v_permlane32_swap_b32 v{W}, v{W+2}\nv_permlane32_swap_b32 v{W+1}, v{W+3}\nv_add_f32 v{W}, v{W}, v{W+2}\nv_add_f32 v{W+1}, v{W+1}, v{W+3}')
        A(f'v_permlane16_swap_b32 v{W}, v{W+1}\nv_add_f32 v{W}, v{W}, v{W+1}\nv_add_f32_dpp v{W}, v{W}, v{W} row_ror:8 {DPPM}')
        rb(W,W); A(f'v_mul_f32 v{W}, v{W}, v{gate}'); rb(W,W); A(f'v_add_f32 v{vx}, v{vx}, v{W}'); rb(vx,vx)
    reduce_gather(8,48,vga)
    A(EX8)
    A(f'buffer_store_dword v{vx}, v{vb}, {WS}, s50 offen sc1\ns_mov_b64 exec, -1')
    stamp(2)
    reduce_gather(9,49,vgb)
    A(EX8)
    A(f'buffer_store_short_d16_hi v{vx}, v{va}, {SB}, s55 offen')
    A(f's_cmp_lg_u32 s54, 0\ns_cbranch_scc1 L_rend\ns_mov_b64 exec, 1\nv_mov_b32 v{T0}, s{sTag}\nv_mov_b32 v{vb}, {EPOCH}\nbuffer_store_dword v{T0}, v{vb}, {WS}, 0 offen sc1\nL_rend:\ns_mov_b64 exec, -1')
    stamp(3)
    endwave()
    BT=24; T0=32
    def slab_consts():
        sel_consts()
        A(f'v_and_b32 v{vso}, 1, v1\nv_lshlrev_b32 v{vso}, 7, v{vso}\nv_and_b32 v{T0}, 7, v0\nv_lshl_add_u32 v{vso}, v{T0}, 4, v{vso}\nv_lshrrev_b32 v{T0}, 5, v0\nv_lshl_add_u32 v{vso}, v{T0}, 3, v{vso}')
        A(f'v_lshlrev_b32 v{va}, 5, v1')
    def slab_stage(WB,soff):
        A(f'ds_read_b128 {vr(P,4)}, v{va} offset:{OVEC}\nds_read_b128 {vr(P+4,4)}, v{va} offset:{OVEC+16}')
        A('s_waitcnt lgkmcnt(1)')
        mkb(0)
        for u in range(8):
            if u+1<8:
                if u+1==4: A('s_waitcnt lgkmcnt(0)')
                mkb(u+1)
            for c in range(3):
                A(f'{MF} {vr(DD+4*c,4)}, {vr(WB+12*u+4*c,4)}, {vr(BT+4*(u&1),4)}, {vr(DD+4*c,4) if u else 0}')
        for c in range(3):
            d=DD+4*c
            A(f'v_permlane32_swap_b32 v{d}, v{d+2}\nv_permlane32_swap_b32 v{d+1}, v{d+3}')
        for c in range(3):
            d=DD+4*c
            A(f'v_add_f32_dpp v{d}, v{d+2}, v{d} row_ror:8 {DPPM}\nv_add_f32_dpp v{d+1}, v{d+3}, v{d+1} row_ror:8 {DPPM}')
        for c in range(3):
            d=DD+4*c
            A(f'v_min_u32 v{d}, -2, v{d}\nv_min_u32 v{d+1}, -2, v{d+1}')
        A(EX8)
        for c in range(3): A(f'buffer_store_dwordx2 {vr(DD+4*c,2)}, v{vso}, {WS}, s{soff} offen offset:{256*c} sc1')
        A('s_mov_b64 exec, -1')
    A(f'L_wo:\ns_cmp_eq_u32 s3, 3\ns_cbranch_scc1 L_wog')
    srd(36,'s12','s13',4096*1152)
    A(f'v_lshrrev_b32 v{vc}, 1, v1\nv_lshlrev_b32 v{vc}, 5, v{vc}\nv_bfe_u32 v{T0}, v0, 3, 1\nv_lshl_add_u32 v{vc}, v{T0}, 3, v{vc}\nv_and_b32 v{T0}, 1, v1\nv_lshl_add_u32 v{vc}, v{T0}, 2, v{vc}')
    A(f'v_mul_u32_u24 v{vc}, 1152, v{vc}\nv_and_b32 v{T0}, 7, v0\nv_lshl_add_u32 v{vc}, v{T0}, 4, v{vc}')
    A(f's_mul_i32 s48, s54, {64*1152}\ns_mul_i32 s49, s3, 384\ns_add_u32 s48, s48, s49')
    for u in range(8):
        A(f's_add_u32 s49, s48, {(16*(u&1)+(u>>1))*1152}')
        for c in range(3):
            if HT: A(f's_waitcnt vmcnt({HT-1})')
            A(f'buffer_load_dwordx4 {vr(W+12*u+4*c,4)}, v{vc}, {SA}, s49 offen offset:{128*c} {wf}')
    slab_consts()
    A(f's_mul_i32 s48, s54, 2304\ns_mul_i32 s49, s3, 768\ns_add_u32 s48, s48, s49\ns_add_u32 s48, s48, {B1}')
    A('s_waitcnt vmcnt(0)\ns_barrier\ns_barrier\ns_barrier')
    stamp(5)
    slab_stage(W,48)
    stamp(6)
    endwave()
    A('L_wog:')
    A(f'v_mul_u32_u24 v{vb}, 1536, v1\nv_and_b32 v{T0}, 15, v0\nv_lshl_add_u32 v{vc}, v{T0}, 4, v{vb}')
    A(f'v_lshlrev_b32 v{va}, 3, v{T0}\nv_lshl_add_u32 v{va}, v1, 1, v{va}')
    A(f's_lshr_b32 s48, s54, 2\ns_mul_i32 s48, s48, {16*1536}\ns_and_b32 s49, s54, 3\ns_mul_i32 s49, s49, 384\ns_add_u32 s48, s48, s49\ns_add_u32 s48, s48, {PART}')
    A('s_add_u32 s49, s48, 6144\ns_add_u32 s50, s49, 6144\ns_add_u32 s51, s50, 6144')
    A(f's_mov_b32 s{sSpin}, 0\ns_barrier\ns_barrier')
    stamp(1)
    ML2=W+16
    A('L_ap:')
    for t in range(4): A(f'buffer_load_dwordx4 {vr(W+4*t,4)}, v{vc}, {WS}, s{48+t} offen sc1')
    for t in range(4): A(f'buffer_load_dwordx2 {vr(ML2+2*t,2)}, v{vb}, {WS}, s{48+t} offen offset:256 sc1')
    A('s_waitcnt vmcnt(0)')
    A(f'v_max_u32 v{T0}, v{W}, v{W+1}')
    for k in range(1,12): A(f'v_max3_u32 v{T0}, v{T0}, v{W+2*k}, v{W+2*k+1}')
    A(f'v_cmp_eq_u32 vcc, -1, v{T0}')
    spin_tail('L_ap','s_cbranch_vccnz')
    stamp(2)
    A(f'v_max3_f32 v{T0}, v{ML2}, v{ML2+2}, v{ML2+4}\nv_max_f32 v{T0}, v{T0}, v{ML2+6}')
    xrow('v_max_f32',T0,T0+1)
    for t in range(4): A(f'v_sub_f32 v{ML2+2*t}, v{ML2+2*t}, v{T0}')
    for t in range(4): A(f'v_exp_f32 v{ML2+2*t}, v{ML2+2*t}')
    A(f'v_mul_f32 v{T0}, v{ML2}, v{ML2+1}')
    for t in range(1,4): A(f'v_fmac_f32 v{T0}, v{ML2+2*t}, v{ML2+2*t+1}')
    for r in range(4): A(f'v_mul_f32 v{W+r}, v{W+r}, v{ML2}')
    for t in range(1,4):
        for r in range(4): A(f'v_fmac_f32 v{W+r}, v{W+4*t+r}, v{ML2+2*t}')
    xrow('v_add_f32',T0,T0+1)
    A(f'v_rcp_f32 v{T0}, v{T0}')
    A(f'v_permlane32_swap_b32 v{W}, v{W+2}\nv_permlane32_swap_b32 v{W+1}, v{W+3}\nv_add_f32 v{W}, v{W}, v{W+2}\nv_add_f32 v{W+1}, v{W+1}, v{W+3}')
    A(f'v_permlane16_swap_b32 v{W}, v{W+1}\nv_add_f32 v{W}, v{W}, v{W+1}\nv_mul_f32 v{W}, v{W}, v{T0}')
    rb(W,W)
    A(f'ds_write_b16_d16_hi v{va}, v{W} offset:{OVEC}\ns_waitcnt lgkmcnt(0)\ns_barrier')
    stamp(3)
    endwave()
    W1=40; W2=112; FR=220
    A('L_ffn:')
    srd(36,'s16','s17',576*9216); srd(40,'s18','s19',4608*1152)
    slab_consts()
    A(f'v_lshrrev_b32 v{vc}, 3, v0\nv_mul_u32_u24 v{vc}, 9216, v{vc}\nv_and_b32 v{T0}, 7, v0\nv_lshlrev_b32 v{T0+1}, 1, v1\nv_xor_b32 v{T0}, v{T0}, v{T0+1}\nv_lshl_add_u32 v{vc}, v{T0}, 4, v{vc}')
    A(f'v_lshrrev_b32 v20, 2, v0\nv_lshlrev_b32 v20, 7, v20\nv_bfe_u32 v{T0}, v0, 3, 2\nv_xor_b32 v{T0}, s3, v{T0}\nv_lshl_add_u32 v20, v{T0}, 5, v20\nv_and_b32 v{T0}, 3, v0\nv_lshl_add_u32 v20, v{T0}, 3, v20\nv_add_u32 v21, 36864, v20')
    A(f'v_lshlrev_b32 v{vb}, 4, v1\ns_lshl_b32 s49, s3, 3\nv_add_u32 v22, s49, v{va}')
    A(f's_mul_i32 s51, s3, {144*9216}\ns_lshl_b32 s49, s54, 7\ns_add_u32 s51, s51, s49\ns_mul_i32 s55, s3, {144*128}\ns_add_u32 s55, s55, {WBLK}')
    def w1_dma():
        A('s_mov_b32 m0, s55')
        for t in range(18):
            if t: A(f's_add_u32 m0, m0, 1024\ns_add_u32 s51, s51, {8*9216}')
            A(f'buffer_load_dwordx4 v{vc}, {SA}, s51 offen {wf} lds')
    def w1_tr():
        for t in range(18):
            a=20 if t<9 else 21; o=WBLK+4096*(t%9)
            A(f'ds_read_b64_tr_b16 {vr(W1+4*t,2)}, v{a} offset:{o}\nds_read_b64_tr_b16 {vr(W1+4*t+2,2)}, v{a} offset:{o+2048}')
    def stage1():
        for t in range(9): A(f'ds_read_b128 {vr(FR+4*t,4)}, v{vb} offset:{VEC1+64*t}')
        for t in range(18):
            A(f's_waitcnt lgkmcnt({8 if t<=9 else 17-t})')
            A(f'{MF} {vr(DD,4)}, {vr(W1+4*t,4)}, {vr(FR+4*(t%9),4)}, {vr(DD,4) if t else 0}')
            if t<9: A(f'ds_read_b128 {vr(FR+4*t,4)}, v{vb} offset:{VEC1+64*(t+9)}')
        for r in range(4): A(f'v_max_f32 v{DD+r}, 0, v{DD+r}')
        A(f'v_cvt_pk_bf16_f32 v{DD+4}, v{DD}, v{DD+1}\nv_cvt_pk_bf16_f32 v{DD+5}, v{DD+2}, v{DD+3}')
        A('s_mov_b32 exec_lo, 0x00010001\ns_mov_b32 exec_hi, 0x00010001')
        A(f'ds_write_b64 v22, {vr(DD+4,2)} offset:{OVEC}\ns_mov_b64 exec, -1\ns_waitcnt lgkmcnt(0)\ns_barrier')
    A('s_cmp_eq_u32 s3, 3\ns_cbranch_scc1 L_ffg')
    A(f'v_bfe_u32 v{T0}, v0, 3, 1\nv_lshl_add_u32 v{vd}, v1, 2, v{T0}\nv_mul_u32_u24 v{vd}, 1152, v{vd}\nv_and_b32 v{T0}, 7, v0\nv_lshl_add_u32 v{vd}, v{T0}, 4, v{vd}')
    A(f's_mul_i32 s56, s54, {64*1152}\ns_mul_i32 s49, s3, 384\ns_add_u32 s56, s56, s49')
    A(f's_mul_i32 s48, s54, 2304\ns_mul_i32 s49, s3, 768\ns_add_u32 s48, s48, s49\ns_add_u32 s48, s48, {C1}')
    def w2_loads():
        for u in range(8):
            A(f's_add_u32 s49, s56, {(16*(u>>1)+2*(u&1))*1152}')
            for c in range(3): A(f'buffer_load_dwordx4 {vr(W2+12*u+4*c,4)}, v{vd}, {SB}, s49 offen offset:{128*c} {wf}')
    if not w1_late: w1_dma()
    if not w2_late: w2_loads()
    A('s_waitcnt vmcnt(0)\ns_barrier\ns_barrier')
    stamp(4)
    if w1_late: w1_dma()
    if w2_late: w2_loads()
    if w1_late: A(f's_waitcnt vmcnt({24 if w2_late else 0})\ns_barrier')
    w1_tr()
    A('s_waitcnt vmcnt(0) lgkmcnt(0)')
    stamp(5)
    A('s_barrier')
    stage1()
    stamp(6)
    slab_stage(W2,48)
    stamp(7)
    endwave()
    A('L_ffg:')
    T0=160; X=176; GG=40; SH=112; SCL=122
    gamma8(vg)
    items=[]
    for kk in range(3):
        for b3 in range(3): A(f's_mov_b32 s{80+3*kk+b3}, {MODG+(kk*54+27)*512+4096*b3}')
        items+=[(80+3*kk+n//8,512*(n%8)) for n in range(18)]
    gather_gran(items,GG,vg,8)
    for n in range(18): A(f'v_add_f32 v{GG+2*n}, v{GG+2*n}, v{GG+36+2*n}')
    for n in range(18): A(f'v_add_f32 v{GG+2*n}, v{GG+2*n}, v{GG+72+2*n}')
    for i in range(9): rb(SH+i,GG+2*i); rb(SCL+i,GG+18+2*i)
    for i in range(9): A(f'v_add_f32 v{SCL+i}, 1.0, v{SCL+i}')
    for i in range(9): rb(SCL+i,SCL+i)
    A(f'v_and_b32 v{vd}, 35, v0\nv_bfe_u32 v{T0}, v0, 2, 2\nv_lshl_add_u32 v{vd}, v{T0}, 3, v{vd}\nv_bfe_u32 v{T0}, v0, 4, 1\nv_lshl_add_u32 v{vd}, v{T0}, 2, v{vd}\nv_lshlrev_b32 v{vd}, 1, v{vd}')
    A(f'v_lshlrev_b32 v{vg}, 2, v0\ns_mov_b32 s48, {X1}\ns_mov_b32 s{sSpin}, 0')
    if not w1_late: w1_dma()
    A('s_waitcnt vmcnt(0)\ns_barrier\ns_barrier')
    if w1_late: w1_dma(); A('s_waitcnt vmcnt(0)\ns_barrier')
    w1_tr()
    stamp(1)
    A('L_xp:')
    for i in range(9): A(f'buffer_load_dword v{X+i}, v{vg}, {WS}, s48 offen offset:{256*i} sc1')
    A('s_waitcnt vmcnt(0)')
    A(f'v_max3_u32 v{T0}, v{X}, v{X+1}, v{X+2}')
    for i in (3,5,7): A(f'v_max3_u32 v{T0}, v{T0}, v{X+i}, v{X+i+1}')
    A(f'v_cmp_eq_u32 vcc, -1, v{T0}')
    spin_tail('L_xp','s_cbranch_vccnz')
    stamp(2)
    layernorm(X,9); modulate(X,9,[SH+i for i in range(9)],[SCL+i for i in range(9)])
    for i in range(9): A(f'ds_write_b16_d16_hi v{vd}, v{X+i} offset:{VEC1+128*i}')
    A('s_waitcnt lgkmcnt(0)\ns_barrier')
    stamp(3)
    stage1()
    endwave()
    if diag:
        A('L_stampout:\ns_getreg_b32 s3, hwreg(HW_REG_HW_ID)')
        A('s_waitcnt vmcnt(0) lgkmcnt(0)\ns_mov_b64 exec, 1')
        A(f's_lshl_b32 s48, s2, 8\ns_lshl_b32 s49, s96, 5\ns_add_u32 s48, s48, s49\ns_add_u32 s48, s48, {STAMP}\nv_mov_b32 v2, 0')
        for k in range(8): A(f'v_mov_b32 v{4+k}, s{64+2*k}')
        A(f'buffer_store_dwordx4 v[4:7], v2, {WS}, s48 offen\nbuffer_store_dwordx4 v[8:11], v2, {WS}, s48 offen offset:16')
    A('L_end:\ns_endpgm')
    A('.section .rodata,"a"\n.p2align 6\n.amdhsa_kernel %s'%KNAME)
    A('.amdhsa_next_free_vgpr 256\n.amdhsa_next_free_sgpr 100\n.amdhsa_accum_offset 256\n.amdhsa_group_segment_fixed_size 0\n.amdhsa_kernarg_size 104')
    A('.amdhsa_user_sgpr_count 2\n.amdhsa_user_sgpr_kernarg_segment_ptr 1\n.amdhsa_system_sgpr_workgroup_id_x 1\n.amdhsa_float_denorm_mode_32 3\n.end_amdhsa_kernel')
    txt='\n'.join(L)
    if diag: txt=txt.replace('v_readfirstlane_b32 s3, v1\n','v_readfirstlane_b32 s3, v1\nv_readfirstlane_b32 s96, v1\n',1)
    return finalize([txt])
if __name__=='__main__':
    kw={}
    out='adaLN_cond__gqa_block_cached__dense_activation_relu__decode.s'
    for a in sys.argv[1:]:
        k,v=a.split('=',1)
        if k=='out': out=v
        else:
            try: kw[k]=eval(v)
            except Exception: kw[k]=v
    open(out,'w').write(gen(**kw))
```
